```python
import torch

def _softmax(x, axis=-1):
    return torch.softmax(x, dim=axis)
def _gelu(x):
    return torch.nn.functional.gelu(x, approximate="tanh")
def _silu(x):
    return torch.nn.functional.silu(x)
def _sigmoid(x):
    return torch.sigmoid(x)
def _layernorm(x, axis=-1, eps=1e-5):
    m = x.mean(dim=axis, keepdim=True)
    v = x.var(dim=axis, keepdim=True, unbiased=False)
    return (x - m) / torch.sqrt(v + eps)
def _scatter_add(tgt, idx, src, axis=0):
    return tgt.clone().index_add_(axis, idx, src)
def _segment_sum(src, seg, n):
    out = torch.zeros((n,) + src.shape[1:], dtype=src.dtype)
    return out.index_add_(0, seg, src)
def _pad(x, pw):
    flat = tuple(v for pair in reversed(pw) for v in pair)
    return torch.nn.functional.pad(x, flat)

kernel_name = 'concat_heads__grouped_kv_mqa__spectral_gfnet__prompt'

def setup_inputs():

    _w = (lambda a: (lambda t: t.to(torch.bfloat16) if t.is_floating_point() else t)(torch.as_tensor(a)))
    def _A_setup():
        B, S, D, H = 1, 2048, 640, 32
        Dh = D // H
        return {
            "x": _w((lambda *s: torch.randn(*s, dtype=torch.bfloat16) * 0.05)(B, S, D)),
            "wq": _w((lambda *s: torch.randn(*s, dtype=torch.bfloat16) * 0.8)(D, H * Dh)),
            "wk": _w((lambda *s: torch.randn(*s, dtype=torch.bfloat16) * 0.8)(D, Dh)),
            "wv": _w((lambda *s: torch.randn(*s, dtype=torch.bfloat16) * 0.05)(D, Dh)),
            "wo": _w((lambda *s: torch.randn(*s, dtype=torch.bfloat16) * 0.05)(H * Dh, D)),
        }
    _A_in = _A_setup()

    def _B_setup():
        B, S, D = 1, 2048, 640
        Df = D // 2 + 1
        return {
            "x": _w((lambda *s: torch.randn(*s, dtype=torch.bfloat16) * 0.05)(B, S, D)),
            "w_r": _w((lambda *s: torch.randn(*s, dtype=torch.bfloat16) * 1.6)(S, Df) * 0.02),
            "w_i": _w((lambda *s: torch.randn(*s, dtype=torch.bfloat16) * 1.6)(S, Df) * 0.02),
        }
    _B_in = _B_setup()

    return {
        "A_x": _A_in["x"],
        "A_wq": _A_in["wq"],
        "A_wk": _A_in["wk"],
        "A_wv": _A_in["wv"],
        "A_wo": _A_in["wo"],
        "B_x": _B_in["x"],
        "B_w_r": _B_in["w_r"],
        "B_w_i": _B_in["w_i"],
    }

def reference(A_x, A_wq, A_wk, A_wv, A_wo, B_x, B_w_r, B_w_i):
    def _A_ref(x, wq, wk, wv, wo):
        B, S, D = x.shape
        H = 32
        Dh = D // H
        q = (lambda x, *d: x.permute(*d))((x @ wq).reshape(B, S, H, Dh), 0, 2, 1, 3)
        k = x @ wk
        v = x @ wv
        scores = torch.einsum("bhqd,bkd->bhqk", q, k) * (Dh ** -0.5)
        p = _softmax(scores, axis=-1)
        o = torch.einsum("bhqk,bkd->bhqd", p, v)
        return (lambda x, *d: x.permute(*d))(o, 0, 2, 1, 3).reshape(B, S, H * Dh) @ wo

    def _B_ref(x, w_r, w_i):
        B, S, D = x.shape
        X = (lambda x, axes=(-2,-1): torch.fft.rfft2(x.float(), dim=axes))(x, axes=(-2, -1))
        W = w_r + 1j * w_i
        X = X * W
        y = (lambda x, s, axes=(-2,-1): torch.fft.irfft2(x, s=s, dim=axes).to(torch.bfloat16))(X, (S, D), axes=(-2, -1))
        return y

    a = _A_ref(A_x, A_wq, A_wk, A_wv, A_wo)
    b = _B_ref(B_x, B_w_r, B_w_i)
    return torch.concatenate([a, b], axis=-1)
```

```python
import re
REG = re.compile(r"\b([vs])\[(\d+):(\d+)\]|\b([vs])(\d+)\b|\b(vcc|exec|m0)\b")
def regs_of(op):
    out = []
    for m in REG.finditer(op):
        if m.group(1): out += [f"{m.group(1)}{i}" for i in range(int(m.group(2)), int(m.group(3))+1)]
        elif m.group(4): out.append(f"{m.group(4)}{m.group(5)}")
        else: out.append(m.group(6))
    return out
TRANS = ("v_exp_f32", "v_rcp_f32", "v_log_f32", "v_rsq_f32", "v_sqrt_f32", "v_sin_f32", "v_cos_f32")
def split_ops(s):
    ops = []; depth = 0; cur = ""
    for ch in s:
        if ch == "[": depth += 1
        if ch == "]": depth -= 1
        if ch == "," and depth == 0: ops.append(cur.strip()); cur = ""
        else: cur += ch
    if cur.strip(): ops.append(cur.strip())
    return ops
class Ins:
    def __init__(self, text):
        self.text = text
        t = text.split(";")[0].strip()
        self.label = t.endswith(":")
        self.dirv = t.startswith(".") and not self.label
        self.op = "" if (self.label or self.dirv or not t) else t.split()[0]
        rest = t[len(self.op):] if self.op else ""
        ops = split_ops(rest)
        self.ops = ops
        op = self.op
        self.mfma = op.startswith("v_mfma") or op.startswith("v_smfmac")
        self.valu = op.startswith("v_") and not self.mfma
        self.vmem = op.startswith("buffer_") or op.startswith("global_")
        self.ds = op.startswith("ds_")
        self.salu = op.startswith("s_") and not op.startswith(("s_waitcnt", "s_nop", "s_barrier", "s_branch", "s_cbranch", "s_sleep", "s_endpgm", "s_setprio", "s_load", "s_memtime", "s_memrealtime"))
        self.branch = op.startswith(("s_branch", "s_cbranch", "s_endpgm", "s_setpc", "s_swappc"))
        self.w = []; self.r = []; self.srcc = []; self.passes = 0; self.stdata = []
        R = [regs_of(o) for o in ops]
        flat = lambda x: [a for b in x for a in b]
        if self.mfma:
            self.passes = 8 if "32x32" in op else 4
            self.w = R[0]; self.ab = R[1] + R[2]
            if op.startswith("v_smfmac"): self.srcc = R[0]; self.ab = self.ab + R[3]
            else: self.srcc = R[3]
            self.r = self.ab + self.srcc
        elif self.valu:
            if op.startswith("v_cmp"): self.w = R[0]; self.r = flat(R[1:])
            elif op.startswith("v_permlane") and "swap" in op: self.w = R[0]+R[1]; self.r = R[0]+R[1]
            elif "_co_" in op: self.w = R[0]+R[1]; self.r = flat(R[2:])
            else:
                self.w = R[0]; self.r = flat(R[1:])
                if op.startswith(("v_fmac", "v_pk_fmac", "v_writelane")): self.r = self.r + R[0]
                if op.startswith("v_cndmask") and len(ops) == 3: self.r.append("vcc")
        elif self.vmem:
            lds = " lds" in t
            if "_load" in op and not lds: self.w = R[0]; self.r = flat(R[1:])
            else:
                self.r = flat(R)
                if "store" in op and ("x3" in op or "x4" in op): self.stdata = R[0]
            self.lds = lds
        elif self.ds:
            if op.startswith("ds_read") or "rtn" in op or "permute" in op: self.w = R[0]; self.r = flat(R[1:])
            else: self.r = flat(R)
        elif self.salu:
            if op.startswith("s_cmp"): self.r = flat(R)
            else:
                self.w = R[0] if R else []; self.r = flat(R[1:])
                if "saveexec" in op: self.w = self.w + ["exec"]
        self.states = 1
        if op == "s_nop": self.states = int(ops[0]) + 1
        if not op: self.states = 0
def need(p, c):
    n = 0
    W = set(p.w)
    if p.mfma:
        P = p.passes
        far = {4: 8, 8: 12}[P]; ovl = {4: 6, 8: 10}[P]
        if c.mfma:
            if W & set(c.ab): n = max(n, far)
            if W & set(c.srcc):
                if not (list(c.srcc) == list(p.w) and c.passes == P): n = max(n, ovl)
            elif W & set(c.w): n = max(n, ovl)
        elif (c.valu or c.vmem or c.ds) and W & (set(c.r) | set(c.w)): n = max(n, far)
        if c.valu and set(p.srcc) & set(c.w): n = max(n, {4: 3, 8: 7}[P])
    if p.valu:
        vW = {x for x in W if x[0] == "v" and x != "vcc"}; sW = W - vW
        if c.mfma and vW & set(c.r): n = max(n, 2)
        if c.mfma and "exec" in W: n = max(n, 4)
        if c.op.startswith("v_permlane") and vW & set(c.r): n = max(n, 2)
        if c.op.startswith(("v_readfirstlane", "v_readlane")) and vW & set(c.r): n = max(n, 1)
        if p.op.startswith(TRANS) and (c.valu and not c.op.startswith(TRANS)) and vW & set(c.r): n = max(n, 1)
        if "dpp" in c.text and vW & set(c.r): n = max(n, 2)
        if c.valu and sW & set(c.r): n = max(n, 4 if c.op.startswith(("v_readlane", "v_writelane")) else 2)
        if c.vmem and sW & set(c.r): n = max(n, 5)
        if c.salu and sW & set(c.r): n = max(n, 1)
    if p.salu and "m0" in W and ((c.vmem and getattr(c, "lds", False))): n = max(n, 1)
    if p.stdata and set(p.stdata) & set(c.w): n = max(n, 2)
    return n
class Asm:
    def __init__(self): self.l = []; self.uid = 0
    def __call__(self, s):
        for line in s.split("\n"):
            line = line.strip()
            if line: self.l.append(line)
    def lab(self, base):
        self.uid += 1; return f"L_{base}_{self.uid}"
    def finish(self):
        out = []; hist = []
        ins = [Ins(x) for x in self.l]
        for c in ins:
            if c.op:
                d = 0; req = 0
                for p in reversed(hist):
                    if d >= 20: break
                    k = need(p, c) - d
                    if k > req: req = k
                    d += p.states
                while req > 0:
                    k = min(req, 16); nop = Ins(f"s_nop {k-1}"); out.append(nop); hist.append(nop); req -= k
                hist.append(c)
                if c.op in ("s_branch", "s_endpgm"): hist = []
            out.append(c)
        self.check_branches(out)
        return "\n".join(("" if (x.label or x.dirv) else "    ") + x.text for x in out) + "\n"
    def check_branches(self, out):
        pos = {x.text.split(";")[0].strip()[:-1]: i for i, x in enumerate(out) if x.label}
        for i, x in enumerate(out):
            if x.op.startswith(("s_branch", "s_cbranch")):
                tgt = pos.get(x.ops[0])
                if tgt is None: continue
                prods = []; d = 0; j = i
                while j >= 0 and d < 20:
                    if out[j].op:
                        prods.append((out[j], d)); d += out[j].states
                        if j != i and out[j].op in ("s_branch", "s_endpgm"): break
                    j -= 1
                d2 = 0; j = tgt
                while j < len(out) and d2 < 20:
                    c = out[j]
                    if c.op:
                        for p, dp in prods:
                            if need(p, c) > dp + d2:
                                raise RuntimeError(f"hazard across branch {x.text}: {p.text} -> {c.text} need {need(p,c)} have {dp+d2}")
                        d2 += c.states
                        if c.op in ("s_branch", "s_endpgm"): break
                    j += 1
```

```python
import numpy as np
L = np.arange(64)
def bf16_bits(x):
    u = np.asarray(x, np.float32).view(np.uint32).astype(np.uint64)
    r = (u + 0x7FFF + ((u >> 16) & 1)) >> 16
    return (r & 0xFFFF).astype(np.uint32)
def bf16_round(x): return (bf16_bits(x) << 16).astype(np.uint32).view(np.float32)
def pack(lo, hi): return (bf16_bits(lo) | (bf16_bits(hi) << 16)).astype(np.uint32)
def f32bits(x): return np.asarray(x, np.float32).view(np.uint32)
def frag(fn, nslots=8):
    v = np.stack([np.broadcast_to(np.asarray(fn(L, j), np.float64), (64,)) for j in range(nslots)])
    return np.stack([pack(v[2*r], v[2*r+1]) for r in range(nslots//2)])
def cs(num, den):
    a = 2*np.pi*(np.asarray(num) % den)/den
    return np.cos(a), np.sin(a)
n32 = L & 31; h32 = L >> 5; n16 = L & 15; g16 = L >> 4
def rho(t, h, j): return 16*t + 8*(j >> 2) + 4*h + (j & 3)
T = {}
for t in range(2):
    T[f"C32_{t}"] = frag(lambda l, j: cs(rho(t, l >> 5, j)*(l & 31), 32)[0])
    T[f"S32_{t}"] = frag(lambda l, j: cs(rho(t, l >> 5, j)*(l & 31), 32)[1])
    T[f"N32_{t}"] = frag(lambda l, j: -cs(rho(t, l >> 5, j)*(l & 31), 32)[1])
def b_of(r, h): return 8*(r >> 2) + 4*h + (r & 3)
tc = []; ts = []
for r in range(12):
    b = b_of(r, h32); ok = b < 20
    c, s = cs(b*n32, 640); tc.append(f32bits(c*ok)); ts.append(f32bits(s*ok))
T["TW1"] = np.stack(tc+ts)
def e_of_m(m):
    G = m >> 3; hm = (m >> 2) & 1; i = m & 3; r = 4*G+i
    return 10*hm + r, r < 10
def s2(kind):
    def f(l, j):
        e, ok = e_of_m(l & 31); h = l >> 5
        if kind in ("C", "S", "N"):
            b = 8*(j >> 2) + 4*h + (j & 3); c, s = cs(b*e, 20)
            return {"C": c, "S": s, "N": -s}[kind]*ok
        b = 16 + (j & 3); c, s = cs(b*e, 20); ok = ok & (h == 0)
        if kind == "R": return (c if j < 4 else s)*ok
        return (-s if j < 4 else c)*ok
    return frag(f)
for k in "CSNRI": T["F20"+k] = s2(k)
def m3(l, j):
    m = l & 31; h = l >> 5; G = m >> 3; hm = (m >> 2) & 1; i = m & 3
    c = 4*hm + 2*G + (i >> 1); ri = i & 1; ok = G < 2
    p = j >> 1; rj = j & 1
    sig = 1 - 2*(c & 1)
    w = np.exp(-2j*np.pi*p*c/8)
    al = w*(1 - 1j*sig)/2; be = w*(1 + 1j*sig)/2
    if rj == 0:
        u = np.where(ri == 0, al.real, al.imag); v = np.where(ri == 0, be.real, be.imag)
    else:
        u = np.where(ri == 0, -al.imag, al.real); v = np.where(ri == 0, be.imag, -be.real)
    return np.where(h == 0, u, v)*ok
T["M3"] = frag(m3)
def m3i(l, j):
    m = l & 31; h = l >> 5; G = m >> 3; hm = (m >> 2) & 1; i = m & 3
    p = 2*G + (i >> 1); ro = i & 1; ok = G < 2
    c = 4*h + (j >> 1); rj = j & 1; sig = 1 - 2*(c & 1)
    ga = np.exp(2j*np.pi*p*c/8)*(1 + 1j*sig); de = np.exp(-2j*np.pi*p*c/8)*(1 + 1j*sig)
    if rj == 0:
        a = np.where(ro == 0, ga.real, ga.imag); b = np.where(ro == 0, de.real, de.imag)
    else:
        a = np.where(ro == 0, -ga.imag, ga.real); b = np.where(ro == 0, de.imag, -de.real)
    return np.where(hm == 0, a, b)*ok
T["M3I"] = frag(m3i)
def sA(out, kap, ns):
    def f(l, j):
        b = l & 31; h = l >> 5; e = 10*h + 4*kap + (j >> 1); rj = j & 1
        c, s = cs(b*e, 20); ok = b < 20
        if out == 0: return (c if rj == 0 else -s)*ok
        return (s if rj == 0 else c)*ok
    return frag(f, ns)
T["I20"] = np.concatenate([sA(0, 0, 8), sA(0, 1, 8), sA(1, 0, 8), sA(1, 1, 8), sA(0, 2, 4), sA(1, 2, 4)])
tc = []; ts = []
SCALE = 1.0/(2048*640)
for r in range(16):
    cp = b_of(r, h32); ok = n32 < 20
    c, s = cs(cp*n32, 640); tc.append(f32bits(c*ok*SCALE)); ts.append(f32bits(s*ok*SCALE))
T["TW3"] = np.stack(tc+ts)
def f16t(out):
    def f(l, j):
        e = l & 15; b = 4*(l >> 4) + (j & 3); c, s = cs(b*e, 16)
        if out == 0: return c if j < 4 else s
        return -s if j < 4 else c
    return frag(f)
T["F16"] = np.concatenate([f16t(0), f16t(1)])
for c0 in range(8):
    def G(out):
        def f(l, j):
            kap = c0 + 8*(l & 15); a = 4*(l >> 4) + (j >> 1); rj = j & 1; c, s = cs(a*kap, 128)
            if out == 0: return c if rj == 0 else s
            return -s if rj == 0 else c
        return frag(f)
    def H(out):
        def f(l, j):
            a = l & 15; kap = c0 + 8*(4*(l >> 4) + (j & 3)); c, s = cs(a*kap, 128)
            if out == 0: return c if j < 4 else -s
            return s if j < 4 else c
        return frag(f)
    tw_f = [cs((4*g16 + r)*(c0 + 8*n16), 2048) for r in range(4)]
    tw_i = [cs(n16*(c0 + 8*(4*g16 + r)), 2048) for r in range(4)]
    T[f"B2_{c0}"] = np.concatenate([G(0), G(1),
        np.stack([f32bits(x[0]) for x in tw_f] + [f32bits(x[1]) for x in tw_f]),
        np.stack([f32bits(x[0]) for x in tw_i] + [f32bits(x[1]) for x in tw_i]),
        H(0), H(1)])
ORDER = ["C32_0", "C32_1", "S32_0", "S32_1", "N32_0", "N32_1", "TW1", "F20C", "F20S", "F20N", "F20R", "F20I", "M3",
         "M3I", "I20", "TW3", "F16"] + [f"B2_{c}" for c in range(8)]
OFF = {}; blob = []; o = 0
for k in ORDER:
    t = T[k]; assert t.shape[0] % 4 == 0, k
    OFF[k] = o
    for q in range(t.shape[0]//4):
        blob.append(t[4*q:4*q+4].T.reshape(-1))
        o += 1024
BLOB = np.concatenate(blob).astype(np.uint32)

def unpack(regs):
    out = []
    for r in regs:
        out.append(((r & 0xFFFF) << 16).astype(np.uint32).view(np.float32)); out.append((r & 0xFFFF0000).astype(np.uint32).view(np.float32))
    return np.stack(out).astype(np.float64)
def mfma32(A, B, C=None):
    a = unpack(A); b = unpack(B); ns = a.shape[0]
    Am = np.zeros((32, 2*ns)); Bm = np.zeros((2*ns, 32))
    for j in range(ns):
        Am[n32, ns*h32 + j] = a[j]; Bm[ns*h32 + j, n32] = b[j]
    D = Am @ Bm
    out = np.stack([D[8*(r >> 2) + 4*h32 + (r & 3), n32] for r in range(16)])
    return out if C is None else out + C
def mfma16(A, B, C=None):
    a = unpack(A); b = unpack(B)
    Am = np.zeros((16, 32)); Bm = np.zeros((32, 16))
    for j in range(8):
        Am[n16, 8*g16 + j] = a[j]; Bm[8*g16 + j, n16] = b[j]
    D = Am @ Bm
    out = np.stack([D[4*g16 + r, n16] for r in range(4)])
    return out if C is None else out + C
def cvt(regs): return np.stack([pack(regs[2*i], regs[2*i+1]) for i in range(len(regs)//2)])
def F(u): return np.asarray(u, np.uint32).view(np.float32).astype(np.float64)
I0 = [0, 3, 6, 8]
def emu_B1(x, s0):
    Z = np.zeros((648, 4), np.uint32)
    for p in range(4):
        rows = [x[s0 + 256*p], x[s0 + 256*(p+4)]]
        A = []
        for kap in range(4):
            t = kap & 1; row = rows[kap >> 1]
            A.append(frag(lambda l, j: row[np.minimum(20*rho(t, l >> 5, j) + np.minimum(l & 31, 19), 639)]))
        re = mfma32(A[0], T["C32_0"]) + mfma32(A[1], T["C32_1"]) + mfma32(A[2], T["S32_0"]) + mfma32(A[3], T["S32_1"])
        im = mfma32(A[0], T["N32_0"]) + mfma32(A[1], T["N32_1"]) + mfma32(A[2], T["C32_0"]) + mfma32(A[3], T["C32_1"])
        tc = F(T["TW1"][:12]); ts = F(T["TW1"][12:])
        r2 = re[:12]*tc + im[:12]*ts; i2 = im[:12]*tc - re[:12]*ts
        B0 = cvt(r2[:8]); B1 = cvt(i2[:8]); B2 = np.concatenate([cvt(r2[8:12]), cvt(i2[8:12])])
        zr = mfma32(T["F20C"], B0) + mfma32(T["F20S"], B1) + mfma32(T["F20R"], B2)
        zi = mfma32(T["F20N"], B0) + mfma32(T["F20C"], B1) + mfma32(T["F20I"], B2)
        for r in range(10):
            Z[n32 + 32*(10*h32 + r), p] = pack(zr[r], zi[r])
    Tout = np.zeros((8, 352), np.uint32)
    for nt in range(11):
        kd = 32*nt + n32
        idx = np.where(h32 == 1, (640 - kd) % 640, kd)
        B = Z[idx].T
        D = mfma32(T["M3"], B)
        for t in range(4): Tout[4*h32 + t, kd] = pack(D[2*t], D[2*t+1])
    return Tout
def emu_B2(Tg, wr, wi, c, gI, w):
    tb = T[f"B2_{c}"]; Gre, Gim = tb[0:4], tb[4:8]; tf = F(tb[8:16]); ti = F(tb[16:24]); Hre, Him = tb[24:28], tb[28:32]
    Fre, Fim = T["F16"][:4], T["F16"][4:]
    out = np.zeros((256, 4), np.uint32)
    for t in range(3):
        kd = 10*gI + I0[w] + t
        A = np.stack([Tg[16*(4*g16 + r) + n16, c, kd] for r in range(4)])
        re = mfma16(A, Gre); im = mfma16(A, Gim)
        r2 = re*tf[:4] + im*tf[4:]; i2 = im*tf[:4] - re*tf[4:]
        B = np.concatenate([cvt(r2), cvt(i2)])
        xr = mfma16(Fre, B); xi = mfma16(Fim, B)
        ks = np.stack([c + 8*n16 + 128*(4*g16 + r) for r in range(4)])
        kk = min(kd, 320)
        a = wr[ks, kk]; b = wi[ks, kk]
        yr = xr*a - xi*b; yi = xr*b + xi*a
        A = np.concatenate([cvt(yi), cvt(yr)])
        re = mfma16(A, Fim); im = mfma16(A, Fre)
        r2 = re*ti[:4] - im*ti[4:]; i2 = im*ti[:4] + re*ti[4:]
        B = np.concatenate([cvt(r2), cvt(i2)])
        ur = mfma16(Hre, B); ui = mfma16(Him, B)
        for r in range(4): out[16*(4*g16 + r) + n16, t] = pack(ur[r], ui[r])
    return out
def kd_loc(kd):
    kd = np.minimum(kd, 320); gI = np.minimum(kd//10, 31); i = kd - 10*gI
    w = np.where(i < 3, 0, np.where(i < 6, 1, np.where(i < 8, 2, 3))); t = i - np.array(I0)[w]
    return gI, w, t
def emu_B3(U, s0):
    Z = np.zeros((648, 4), np.uint32)
    for nt in range(11):
        kd = 32*nt + n32; gI, w, tt = kd_loc(kd)
        B = np.stack([U[4*h32 + t, gI, w, s0, tt] for t in range(4)])
        D = mfma32(T["M3I"], B)
        if nt in (0, 10):
            for r in range(8):
                av = 0.5*(D[r][0] + D[r][32]); D[r][0] = av; D[r][32] = av
        idx = np.where(kd > 320, 640, np.where(h32 == 1, 640 - kd, kd))
        for t in range(4): Z[idx, t] = pack(D[2*t], D[2*t+1])
    y = {}
    for p in range(4):
        A = np.stack([Z[n32 + 32*(10*h32 + r), p] for r in range(10)])
        I = T["I20"]
        re = mfma32(A[0:4], I[0:4]) + mfma32(A[4:8], I[4:8]) + mfma32(A[8:10], I[16:18])
        im = mfma32(A[0:4], I[8:12]) + mfma32(A[4:8], I[12:16]) + mfma32(A[8:10], I[18:20])
        tc = F(T["TW3"][:16]); ts = F(T["TW3"][16:])
        r2 = re*tc - im*ts; i2 = im*tc + re*ts
        A0, A1, A2, A3 = cvt(r2[:8]), cvt(r2[8:]), cvt(i2[:8]), cvt(i2[8:])
        zr = mfma32(A0, T["C32_0"]) + mfma32(A1, T["C32_1"]) + mfma32(A2, T["N32_0"]) + mfma32(A3, T["N32_1"])
        zi = mfma32(A0, T["S32_0"]) + mfma32(A1, T["S32_1"]) + mfma32(A2, T["C32_0"]) + mfma32(A3, T["C32_1"])
        for z, j in ((zr, p), (zi, p+4)):
            row = np.zeros(640)
            for r in range(12):
                b = b_of(r, h32); ok = b < 20
                row[(20*n32 + b)[ok]] = z[r][ok]
            y[s0 + 256*j] = row
    return y
if __name__ == "__main__":
    print("table bytes", BLOB.nbytes, OFF)
    rng = np.random.default_rng(0)
    x = bf16_round(rng.standard_normal((2048, 640))*0.05).astype(np.float64)
    wr = bf16_round(rng.standard_normal((2048, 321))*0.032).astype(np.float64)
    wi = bf16_round(rng.standard_normal((2048, 321))*0.032).astype(np.float64)
    ref = np.fft.irfft2(np.fft.rfft2(x)*(wr + 1j*wi), s=(2048, 640))
    Tg = np.stack([emu_B1(x, s0) for s0 in range(256)])
    U = np.zeros((8, 32, 4, 256, 4), np.uint32)
    for c in range(8):
        for gI in range(32):
            for w in range(4): U[c, gI, w] = emu_B2(Tg, wr, wi, c, gI, w)
    y = np.zeros((2048, 640))
    for s0 in range(256):
        for k, v in emu_B3(U, s0).items(): y[k] = v
    err = np.abs(bf16_round(y) - bf16_round(ref))
    print("max err", err.max(), "rms err", np.sqrt((err**2).mean()), "ref rms", ref.std(), "ref max", np.abs(ref).max())
```

```python
import sys, math
from asmlib import Asm
import tables as TB

NAME = "concat_heads__grouped_kv_mqa__spectral_gfnet__prompt"
PROF = "--prof" in sys.argv
SC = "" if ("--inv" in sys.argv or "--plain" in sys.argv) else " sc1"
OUT = [a for a in sys.argv[1:] if not a.startswith("--")]
OUT = OUT[0] if OUT else f"cdna_kernels/{NAME}.s"

X0, WA, WB, WKV = 0, 81920, 106496, 137728
SLOT_A, SLOT_B = 141824, 0
ZS, WO, BX, SY = 21504, 32768, 124928, 163328
LDS_BYTES = 163840
S_KVL, S_KVD, S_FULL, S_HB, S_BAD, S_ISS, S_LQ, S_KVS, S_QB, S_FREE = 0, 4, 12, 20, 24, 28, 32, 52, 64, 80
SLOTS = [SLOT_A, SLOT_B] + [WO + 21504*k for k in range(4)] + [SLOT_A, SLOT_B]
TILE = 2688
RG = 118784
TP, UP = 11392, 12416
XN, FKV, FB1, FB2, FO = 0, 0x1000, 0x10000, 0x14000, 0x18000
KVI, OBUF, TBUF, UBUF, WSZ = 0x20000, 0x80000, 0x300000, 0x600000, 0xA00000
PROFOFF = 0xA00000
if PROF: WSZ = 0xB00000
sW, sXCD, sI, sRB, sHG, sU0, sKVQ = "s3", "s4", "s5", "s6", "s7", "s8", "s9"
pAX, pWQ, pWK, pWV, pWO, pBX, pWR, pWI, pOUT, pDBG, pWS = 16, 18, 20, 22, 24, 26, 28, 30, 32, 34, 36
NON = "s[38:39]"
rWS, rA, rB, rC = "s[40:43]", "s[44:47]", "s[48:51]", "s[52:55]"
vL, vSY, vONE, vT = "v0", "v1", "v2", "v3"
a = Asm()
def vr(b, n): return f"v[{b}:{b+n-1}]" if n > 1 else f"v{b}"
def srd(base, ptr, size):
    a(f"s_mov_b32 s{base}, s{ptr}\ns_mov_b32 s{base+1}, s{ptr+1}\ns_mov_b32 s{base+2}, {hex(size)}\ns_mov_b32 s{base+3}, 0x20000")
def arrive(off, va=vSY):
    a(f"s_mov_b64 exec, 1\nds_add_u32 {va}, {vONE} offset:{off}\ns_mov_b64 exec, -1")
def wait_min4(off, tgt, sleep, vq):
    l = a.lab("w"); d = a.lab("wd")
    a(f"{l}:\nds_read_b128 {vr(vq,4)}, {vSY} offset:{off}\ns_waitcnt lgkmcnt(0)\nv_min3_u32 v{vq}, v{vq}, v{vq+1}, v{vq+2}\nv_min_u32 v{vq}, v{vq}, v{vq+3}\nv_readfirstlane_b32 s60, v{vq}\ns_cmp_ge_u32 s60, {tgt}\ns_cbranch_scc1 {d}\n{spin(d)}s_sleep {sleep}\ns_branch {l}\n{d}:")
def spin(d):
    return f"s_cmp_eq_u32 s76, 0\ns_cbranch_scc1 {d}\ns_sub_u32 s76, s76, 1\n"
def wait_ge(off, tgt, sleep=1, va=vSY):
    l = a.lab("w"); d = a.lab("wd")
    a(f"{l}:\nds_read_b32 {vT}, {va} offset:{off}\ns_waitcnt lgkmcnt(0)\nv_readfirstlane_b32 s60, {vT}\ns_cmp_ge_u32 s60, {tgt}\ns_cbranch_scc1 {d}\n{spin(d)}s_sleep {sleep}\ns_branch {l}\n{d}:")
def nonce_load():
    a(f"s_load_dwordx2 s[38:39], s[{pWS}:{pWS+1}], {XN}")
def nonce():
    a("s_waitcnt lgkmcnt(0)")
    a("s_mul_i32 s38, s38, 0x9E3779B1\ns_add_u32 s38, s38, 0x7F4A7C15\ns_mul_i32 s39, s39, 0x2C9277B5\ns_add_u32 s39, s39, 0x5851F42D")
def set_flag(soff, v0_):
    a(f"v_mov_b32 v{v0_}, s38\nv_mov_b32 v{v0_+1}, s39\nv_mov_b32 v{v0_+2}, 0\ns_mov_b64 exec, 1")
    a(f"buffer_store_dwordx2 {vr(v0_,2)}, v{v0_+2}, {rWS}, {soff} offen sc1\ns_mov_b64 exec, -1")
def poll(vaddr, soffs, vd, sleep):
    l = a.lab("p"); d = a.lab("pd")
    a(f"{l}:")
    for k, so in enumerate(soffs): a(f"buffer_load_dwordx2 {vr(vd+2*k,2)}, {vaddr}, {rWS}, {so} offen sc1")
    a("s_waitcnt vmcnt(0)")
    a(f"v_cmp_ne_u64 vcc, {NON}, {vr(vd,2)}")
    for k in range(1, len(soffs)):
        a(f"v_cmp_ne_u64 s[62:63], {NON}, {vr(vd+2*k,2)}\ns_or_b64 vcc, vcc, s[62:63]")
    a(f"s_cbranch_vccz {d}\n{spin(d)}s_sleep {sleep}\ns_branch {l}\n{d}:")
def acquire():
    if "--inv" in sys.argv: a("buffer_inv sc1\ns_waitcnt vmcnt(0)")
prof_n = {}
def stamp(role, idx):
    if not PROF: return
    a(f"s_memrealtime s[64:65]\ns_waitcnt lgkmcnt(0)\nv_writelane_b32 v167, s64, {idx}")
def prof_flush():
    if not PROF: return
    a("v_writelane_b32 v167, s76, 63")
    a(f"s_mul_i32 s64, s2, 9\ns_add_u32 s64, s64, {sW}\ns_lshl_b32 s64, s64, 8\ns_add_u32 s64, s64, {PROFOFF}\nv_lshlrev_b32 v166, 2, {vL}")
    a(f"buffer_store_dword v167, v166, {rWS}, s64 offen\ns_waitcnt vmcnt(0)")
def mfma32(d, A, B, C): a(f"v_mfma_f32_32x32x16_bf16 {vr(d,16)}, {vr(A,4)}, {vr(B,4)}, {vr(C,16) if C is not None else 0}")
def mfma32h(d, A, B, C): a(f"v_mfma_f32_32x32x8_bf16 {vr(d,16)}, {vr(A,2)}, {vr(B,2)}, {vr(C,16) if C is not None else 0}")
def mfma16(d, A, B, C): a(f"v_mfma_f32_16x16x32_bf16 {vr(d,4)}, {vr(A,4)}, {vr(B,4)}, {vr(C,4) if C is not None else 0}")
def cvt(d, x, y): a(f"v_cvt_pk_bf16_f32 v{d}, v{x}, v{y}")
def next_u(s):
    a(f"s_add_u32 {s}, {s}, 1\ns_cmp_eq_u32 {s}, 5\ns_cselect_b32 {s}, 0, {s}")

def prologue():
    a(f"""s_cmp_ge_u32 s2, 256
s_cbranch_scc1 L_exit
s_load_dwordx16 s[16:31], s[0:1], 0
s_load_dwordx4 s[32:35], s[0:1], 64
s_load_dwordx2 s[36:37], s[0:1], 80
v_lshrrev_b32 v1, 6, v0
v_and_b32 v0, 63, v0
v_readfirstlane_b32 {sW}, v1
s_and_b32 {sXCD}, s2, 7
s_lshr_b32 {sI}, s2, 3
s_lshr_b32 {sRB}, {sI}, 3
s_lshl2_add_u32 {sRB}, {sXCD}, {sRB}
s_and_b32 {sHG}, {sI}, 7
s_lshr_b32 {sKVQ}, {sHG}, 1
s_and_b32 {sU0}, {sRB}, 3
s_add_u32 {sU0}, {sU0}, {sHG}
s_cmp_ge_u32 {sU0}, 5
s_cselect_b32 s10, 5, 0
s_sub_u32 {sU0}, {sU0}, s10
s_cmp_ge_u32 {sU0}, 5
s_cselect_b32 s10, 5, 0
s_sub_u32 {sU0}, {sU0}, s10
v_mov_b32 {vSY}, {SY}
v_mov_b32 {vONE}, 1
s_mov_b32 s76, 0x40000""")
    if PROF: a("v_mov_b32 v167, 0")
    stamp("all", 0)
    a(f"s_cmp_ge_u32 {sW}, 8\ns_cbranch_scc1 L_loader\ns_barrier\ns_cmp_ge_u32 {sW}, 4\ns_cbranch_scc1 L_helper")

QA1, QA2, QB1, QB2 = 4, 8, 10, 14
OA, OB_, SA, SB, PA, PB = 16, 32, 48, 64, 80, 96
KB1 = [112, 116]; KB2 = [120, 122]; VB = [124, 132]
aK1, aK2, aV0, aV1, vIDX, vSW = 140, 141, 142, 143, 144, "v145"
def att_head():
    XG, WG_, XA, WAa = 148, 151, 154, 162
    AC0, AC1 = 16, 32
    FB = [48, 60, 72]
    sQH, sHP = "s10", "s11"
    a(f"s_and_b32 {sQH}, {sW}, 1\ns_lshr_b32 {sHP}, {sW}, 1\ns_lshl_b32 s12, {sW}, 2\nv_add_u32 {vSW}, s12, {vSY}")
    a("s_waitcnt lgkmcnt(0)")
    srd(40, pWS, WSZ)
    a(f"v_and_b32 v4, 31, {vL}\nv_lshrrev_b32 v5, 5, {vL}\nv_and_b32 v6, 15, {vL}\ns_lshl_b32 s14, {sQH}, 13\nv_lshlrev_b32 v4, 8, v4\nv_add_u32 v4, s14, v4")
    for k in range(8):
        a(f"v_or_b32 v7, {2*k}, v5\nv_xor_b32 v7, v7, v6\nv_lshl_add_u32 v{XA+k}, v7, 4, v4")
    a(f"""v_bfe_u32 v4, {vL}, 4, 1
v_cmp_eq_u32 vcc, 0, v4
v_mov_b32 v7, 0x38282020
v_mov_b32 v8, 0x18081000
v_and_b32 v9, 3, {vL}
v_lshlrev_b32 v9, 3, v9
v_cndmask_b32 v7, v7, v8, vcc
v_bfe_u32 v7, v7, v9, 8
v_mov_b32 v8, 0x48484030
v_bfe_u32 v8, v8, v9, 8
v_bfe_u32 v9, {vL}, 2, 2
v_lshl_add_u32 v9, v5, 3, v9
v_mul_u32_u24 v9, 192, v9
s_and_b32 s14, {sHG}, 1
s_lshl_b32 s14, s14, 5
s_mul_i32 s15, {sHP}, 80
s_add_u32 s14, s14, s15
s_add_u32 s14, s14, {WA}
v_add3_u32 v{WAa}, v9, v7, s14
v_add3_u32 v{WAa+1}, v9, v8, s14""")
    for i in range(32): a(f"v_mov_b32 v{AC0+i}, 0")
    sN = "s12"
    wait_ge(S_KVL, 2)
    stamp("att", 1)
    a(f"s_mov_b32 {sN}, 0\nv_mov_b32 v148, {SY}\nL_qloop:")
    wait_ge(S_LQ, 1, 0, "v148")
    a("v_add_u32 v148, 4, v148")
    def rd(k):
        f = FB[k % 3]
        a(f"ds_read_b128 {vr(f,4)}, v{XA+k}")
        for t in range(2):
            for jh in range(2):
                a(f"ds_read_b64_tr_b16 {vr(f+4+4*t+2*jh,2)}, v{WAa+t} offset:{(16*k+4*jh)*192}")
    rd(0); rd(1)
    for k in range(8):
        if k < 6: rd(k+2); a("s_waitcnt lgkmcnt(10)")
        else: a(f"s_waitcnt lgkmcnt({5 if k == 6 else 1})")
        f = FB[k % 3]
        if k == 6: arrive(S_QB, vSW)
        mfma32(AC0, f+4, f, AC0); mfma32(AC1, f+8, f, AC1)
    for k in range(8): a(f"v_add_u32 v{XA+k}, 16384, v{XA+k}")
    a(f"s_mov_b32 s14, {WB-WA}\ns_cmp_eq_u32 {sN}, 1\ns_cselect_b32 s14, {WKV-WB}, s14\ns_cmp_eq_u32 {sN}, 2\ns_cselect_b32 s14, {(WA-WKV) & 0xffffffff}, s14")
    a(f"v_add_u32 v{WAa}, s14, v{WAa}\nv_add_u32 v{WAa+1}, s14, v{WAa+1}")
    a(f"s_add_u32 {sN}, {sN}, 1\ns_cmp_lt_u32 {sN}, 5\ns_cbranch_scc1 L_qloop")
    stamp("att", 2)
    a(f"""v_lshlrev_b32 v{aK1}, 4, {vL}
v_add_u32 v{aK1}, {SLOT_A}, v{aK1}
v_and_b32 v150, 31, {vL}
v_lshrrev_b32 v151, 5, {vL}
v_lshlrev_b32 v152, 3, v150
v_add_u32 v152, {SLOT_A+1024}, v152
v_mov_b32 v153, {SLOT_A+2560}
v_cmp_lt_u32 s[66:67], 31, {vL}
v_lshlrev_b32 v154, 4, v150
v_lshl_add_u32 v155, v151, 8, v154
v_cndmask_b32 v{aK2}, v152, v153, s[66:67]
v_lshl_add_u32 v156, v151, 6, v154
v_add_u32 v156, 256, v156
v_cmp_lt_u32 vcc, 15, v150
v_and_b32 v157, 27, v150
v_cndmask_b32 v155, v155, v156, vcc
v_add_u32 v155, {SLOT_A+1280}, v155
v_add_u32 v156, 640, v155
v_cmp_eq_u32 vcc, 24, v157
v_mov_b32 v158, {SLOT_A+2560+32}
v_mov_b32 v159, {SLOT_A+2560+16}
v_cndmask_b32 v158, v158, v159, vcc
v_cmp_lt_u32 vcc, 19, v150
v_mov_b32 v{vIDX}, 0xdddd
v_mov_b32 v157, 0
v_cndmask_b32 v{aV0}, v155, v158, vcc
v_cndmask_b32 v{aV1}, v156, v158, vcc""")
    for i in range(4): cvt(QA1+i, AC0+2*i, AC0+2*i+1)
    for i in range(2): cvt(QA2+i, AC0+8+2*i, AC0+9+2*i)
    for i in range(2): cvt(QB1+i, AC0+12+2*i, AC0+13+2*i)
    for i in range(2): cvt(QB1+2+i, AC1+2*i, AC1+1+2*i)
    for i in range(2): cvt(QB2+i, AC1+4+2*i, AC1+5+2*i)
    for r in (QA2, QA2+1, QB2, QB2+1): a(f"v_cndmask_b32 v{r}, v{r}, v157, s[66:67]")

sPB, sEP, sTG, sDK, sDV, sPASS = "s12", "s13", "s14", "s15", "s56", "s57"
def smf(O, V, P): a(f"v_smfmac_f32_32x32x32_bf16 {vr(O,16)}, {vr(V,4)}, {vr(P,8)}, v{vIDX}")
def exps(P, S, i0):
    for i in range(i0, i0+4): a(f"v_exp_f32 v{P+i}, v{S+i}")
DELTA = [(SLOTS[(e+1) % 8] - SLOTS[e]) & 0xffffffff for e in range(8)]
def att_main():
    for e in range(9): a(f"s_mov_b32 s{80+e}, {DELTA[e % 8]}")
    a(f"s_mov_b32 {sPB}, 0\ns_mov_b32 {sPASS}, 0\nL_pass:")
    a(f"s_add_u32 s61, {sPB}, 1")
    for i in range(32): a(f"v_mov_b32 v{OA+i}, 0")
    for i in range(8): a(f"v_mov_b32 v{PB+8+i}, 0")
    for i in range(4): a(f"v_mov_b32 v{VB[1]+4+i}, 0")
    wait_ge(S_FULL, "s61", 0)
    stamp("att", 3)
    for j in range(2):
        a(f"ds_read_b128 {vr(KB1[j],4)}, v{aK1} offset:{j*TILE}\nds_read_b64 {vr(KB2[j],2)}, v{aK2} offset:{j*TILE}")
    a(f"ds_read_b128 {vr(VB[0],4)}, v{aV0}\nds_read_b128 {vr(VB[0]+4,4)}, v{aV1}")
    a(f"s_mov_b32 {sEP}, 0\ns_mov_b32 {sDK}, {DELTA[0]}\ns_waitcnt lgkmcnt(4)")
    mfma32(SA, KB1[0], QA1, None); mfma32h(SA, KB2[0], QA2, SA)
    a(f"s_add_u32 {sTG}, {sPB}, 2\ns_nop 7\ns_nop 1\n.p2align 3\nL_epoch:")
    for j in range(8):
        kb, vb = j & 1, j & 1
        jk = (j+2) % 8; jv = (j+1) % 8
        mfma32(SB, KB1[kb], QB1, None); exps(PA, SA, 0)
        mfma32h(SB, KB2[kb], QB2, SB); exps(PA, SA, 4)
        smf(OB_, VB[1-vb]+4, PB+8); exps(PA, SA, 8)
        a("s_waitcnt lgkmcnt(0)")
        if j == 6:
            a(f"v_readfirstlane_b32 s60, {vT}\nv_add_u32 v{aK1}, {sDK}, v{aK1}\nv_add_u32 v{aK2}, {sDK}, v{aK2}\ns_cmp_lt_u32 s60, {sTG}\ns_cbranch_scc1 L_notfull\nL_full:")
        smf(OA, VB[vb], PA); a(f"ds_read_b128 {vr(KB1[kb],4)}, v{aK1} offset:{jk*TILE}"); exps(PA, SA, 12)
        mfma32(SA, KB1[1-kb], QA1, None); a(f"ds_read_b64 {vr(KB2[kb],2)}, v{aK2} offset:{jk*TILE}"); exps(PB, SB, 0)
        if j == 7: a(f"v_add_u32 v{aV0}, {sDK}, v{aV0}\nv_add_u32 v{aV1}, {sDK}, v{aV1}")
        mfma32h(SA, KB2[1-kb], QA2, SA); a(f"ds_read_b128 {vr(VB[1-vb],4)}, v{aV0} offset:{jv*TILE}"); exps(PB, SB, 4)
        smf(OA, VB[vb]+4, PA+8); a(f"ds_read_b128 {vr(VB[1-vb]+4,4)}, v{aV1} offset:{jv*TILE}")
        if j == 6: arrive(S_FREE, vSW)
        if j == 5: a(f"ds_read_b32 {vT}, {vSY} offset:{S_FULL}")
        exps(PB, SB, 8)
        if j == 7:
            a(f"s_add_u32 {sEP}, {sEP}, 1\ns_mov_b32 m0, {sEP}\ns_cmp_lt_u32 {sEP}, 7\ns_addc_u32 {sTG}, {sTG}, 0\ns_movrels_b32 {sDK}, s80\ns_cmp_lt_u32 {sEP}, 8")
        smf(OB_, VB[vb], PB); exps(PB, SB, 12)
    a("s_cbranch_scc1 L_epoch")
    a("s_nop 1")
    smf(OB_, VB[1]+4, PB+8)
    a("s_waitcnt lgkmcnt(0)")
    stamp("att", 4)
    a(f"s_add_u32 {sPB}, {sPB}, 8")
    a(f"s_lshl_b32 s58, {sRB}, 1\ns_add_u32 s58, s58, s10\ns_lshl_b32 s58, s58, 3\ns_add_u32 s58, s58, {sHG}\ns_mul_i32 s58, s58, 5120\ns_add_u32 s58, s58, {OBUF}")
    a(f"s_lshl_b32 s59, s11, 11\ns_add_u32 s59, s59, s58\ns_lshl_b32 s61, s11, 9\ns_add_u32 s58, s58, s61\ns_add_u32 s58, s58, 4096")
    a(f"v_lshlrev_b32 v146, 4, {vL}\ns_mov_b32 s68, 0x21800000\ns_mov_b32 s69, 0x5d800000")
    a(f"v_rcp_f32 v147, v{OA+12}\nv_cmp_nle_f32 vcc, s68, v{OA+12}\nv_cmp_nge_f32 s[62:63], s69, v{OA+12}\ns_or_b64 s[70:71], vcc, s[62:63]")
    for i in range(12): a(f"v_mul_f32 v{OA+i}, v{OA+i}, v147")
    for i in range(4): cvt(SA+i, OA+2*i, OA+2*i+1)
    for i in range(2): cvt(SA+8+i, OA+8+2*i, OA+9+2*i)
    a(f"buffer_store_dwordx4 {vr(SA,4)}, v146, {rWS}, s59 offen sc1")
    a(f"v_rcp_f32 v147, v{OB_+12}\nv_cmp_nle_f32 vcc, s68, v{OB_+12}\nv_cmp_nge_f32 s[62:63], s69, v{OB_+12}\ns_or_b64 s[70:71], s[70:71], vcc\ns_or_b64 s[70:71], s[70:71], s[62:63]")
    for i in range(12): a(f"v_mul_f32 v{OB_+i}, v{OB_+i}, v147")
    for i in range(4): cvt(SA+4+i, OB_+2*i, OB_+2*i+1)
    for i in range(2): cvt(SA+10+i, OB_+8+2*i, OB_+9+2*i)
    a(f"buffer_store_dwordx4 {vr(SA+4,4)}, v146, {rWS}, s59 offen offset:1024 sc1")
    a(f"s_mov_b32 exec_hi, 0\nbuffer_store_dwordx4 {vr(SA+8,4)}, v146, {rWS}, s58 offen sc1\ns_mov_b64 exec, -1")
    a(f"s_cmp_lg_u32 {sPASS}, 0\ns_cbranch_scc1 L_odone\ns_cmp_eq_u64 s[70:71], 0\ns_cbranch_scc1 L_odone")
    arrive(S_BAD)
    a("L_odone:\ns_waitcnt vmcnt(0) lgkmcnt(0)")
    stamp("att", 5)
    a("s_barrier")
    a(f"s_cmp_lg_u32 {sPASS}, 0\ns_cbranch_scc1 L_tail")
    a(f"ds_read_b32 {vT}, {vSY} offset:{S_BAD}\ns_waitcnt lgkmcnt(0)\nv_readfirstlane_b32 s60, {vT}\ns_cmp_eq_u32 s60, 0\ns_cbranch_scc1 L_tail")
    MA, MB = 146, 147
    a(f"s_mov_b32 {sPASS}, 1\nv_mov_b32 v{MA}, 0xff800000\nv_mov_b32 v{MB}, 0xff800000\ns_mov_b32 {sEP}, 0\nL_mx_e:\ns_mov_b32 m0, {sEP}\ns_nop 0\ns_movrels_b32 {sDK}, s80\ns_sub_u32 {sDK}, {sDK}, {8*TILE}")
    a(f"s_add_u32 s61, {sPB}, {sEP}\ns_add_u32 s61, s61, 1")
    wait_ge(S_FULL, "s61")
    a(f"s_mov_b32 {sTG}, 0\nL_mx_t:")
    a(f"ds_read_b128 {vr(KB1[0],4)}, v{aK1}\nds_read_b64 {vr(KB2[0],2)}, v{aK2}\ns_waitcnt lgkmcnt(0)")
    mfma32(SA, KB1[0], QA1, None); mfma32h(SA, KB2[0], QA2, SA)
    mfma32(SB, KB1[0], QB1, None); mfma32h(SB, KB2[0], QB2, SB)
    for i in range(8): a(f"v_max3_f32 v{MA}, v{MA}, v{SA+2*i}, v{SA+2*i+1}")
    for i in range(8): a(f"v_max3_f32 v{MB}, v{MB}, v{SB+2*i}, v{SB+2*i+1}")
    a(f"v_add_u32 v{aK1}, {TILE}, v{aK1}\nv_add_u32 v{aK2}, {TILE}, v{aK2}\ns_add_u32 {sTG}, {sTG}, 1\ns_cmp_lt_u32 {sTG}, 8\ns_cbranch_scc1 L_mx_t")
    arrive(S_FREE, vSW)
    a(f"v_add_u32 v{aK1}, {sDK}, v{aK1}\nv_add_u32 v{aK2}, {sDK}, v{aK2}")
    a(f"s_add_u32 {sEP}, {sEP}, 1\ns_cmp_lt_u32 {sEP}, 8\ns_cbranch_scc1 L_mx_e\ns_add_u32 {sPB}, {sPB}, 8")
    for M, Q2 in ((MA, QA2), (MB, QB2)):
        a(f"""v_mov_b32 v148, v{M}
v_permlane32_swap_b32 v{M}, v148
v_max_f32 v{M}, v{M}, v148
v_sub_f32 v{M}, 0, v{M}
v_and_b32 v148, 0xffff0000, v{M}
v_sub_f32 v{M}, v{M}, v148
v_and_b32 v149, 0xffff0000, v{M}
v_sub_f32 v{M}, v{M}, v149
v_lshrrev_b32 v148, 16, v148
v_or_b32 v148, v148, v149
v_lshrrev_b32 v149, 16, v{M}
v_cndmask_b32 v{Q2}, v{Q2}, v148, s[66:67]
v_cndmask_b32 v{Q2+1}, v{Q2+1}, v149, s[66:67]""")
    a("s_branch L_pass")
    a("L_notfull:"); wait_ge(S_FULL, sTG, 0); a("s_branch L_full")

def tail():
    AF, BF, AC, vA0, vA1, vO0, vO1 = 4, 104, 144, 164, 165, 100+64+2, 3
    a("L_tail:\ns_setprio 0")
    sNT, sKH = "s10", "s11"
    a(f"s_and_b32 {sNT}, {sW}, 3\ns_lshr_b32 {sKH}, {sW}, 2")
    a(f"""v_lshrrev_b32 v144, 4, {vL}
v_bfe_u32 v145, {vL}, 2, 2
v_and_b32 v146, 3, {vL}
v_lshrrev_b32 v147, 1, v144
v_and_b32 v148, 1, v144
v_mul_u32_u24 v149, 20, v147
v_lshl_add_u32 v149, v148, 2, v149
v_add_u32 v149, v149, v145
v_mul_u32_u24 v149, 160, v149
v_mul_u32_u24 v150, 80, v147
v_mul_u32_u24 v151, 40, v148
v_add3_u32 v150, v150, v151, v145
v_mul_u32_u24 v150, 160, v150
s_mul_i32 s12, {sKH}, {320*160}
s_add_u32 s12, s12, {WO}
v_lshlrev_b32 v146, 3, v146
v_add3_u32 v{vA0}, v149, v146, s12
s_add_u32 s12, s12, {16*160}
v_add3_u32 v{vA1}, v150, v146, s12""")
    def aread(st, dst):
        for mt in range(5):
            for jh in range(2):
                if st < 8: ad, off = vA0, ((st >> 1)*80 + (st & 1)*40 + 8*jh)*160 + 32*mt
                else: ad, off = vA1, ((st-8)*160 + 20*jh)*160 + 32*mt
                a(f"ds_read_b64_tr_b16 {vr(dst+4*mt+2*jh,2)}, v{ad} offset:{off}")
    for st in range(5): aread(st, AF+20*st)
    a(f"""v_and_b32 v145, 15, {vL}
v_lshlrev_b32 v145, 4, v145
v_lshl_add_u32 v145, v148, 9, v145
v_lshl_add_u32 v166, v147, 10, v145
v_mul_u32_u24 v147, 5120, v147
v_add_u32 {vT}, v147, v145
s_lshl_b32 s12, {sRB}, 1
s_lshr_b32 s13, {sNT}, 1
s_add_u32 s12, s12, s13
s_lshl_b32 s12, s12, 1
s_add_u32 s12, s12, {sKH}
s_mul_i32 s12, s12, 20480
s_and_b32 s13, {sNT}, 1
s_lshl_b32 s13, s13, 8
s_add_u32 s12, s12, s13
s_add_u32 s12, s12, {OBUF}""")
    for x in range(1, 4): a(f"s_add_u32 s{12+x}, s12, {5120*x}")
    a("s_add_u32 s58, s12, 4096\ns_add_u32 s59, s14, 4096")
    srd(44, pOUT, 2048*2560)
    for i in range(20): a(f"v_mov_b32 v{AC+i}, 0")
    a("s_waitcnt lgkmcnt(0)")
    stamp("tail", 20)
    a("s_barrier")
    stamp("tail", 21)
    for st in range(8): a(f"buffer_load_dwordx4 {vr(BF+4*st,4)}, v166, {rWS}, s{12+(st>>1)} offen offset:{2048*(st&1)} sc1")
    for st in range(2): a(f"buffer_load_dwordx4 {vr(BF+32+4*st,4)}, {vT}, {rWS}, s{58+st} offen sc1")
    for st in range(10):
        a(f"s_waitcnt vmcnt({9-st})")
        if st >= 5: a(f"s_waitcnt lgkmcnt({min(15, 10*(9-st))})")
        af = AF + 20*(st % 5)
        for mt in range(5): mfma16(AC+4*mt, af+4*mt, BF+4*st, AC+4*mt)
        if st < 5: aread(st+5, af)
    stamp("tail", 22)
    a(f"s_mul_i32 s12, {sNT}, 5120\nv_lshlrev_b32 v4, 4, {vL}\nv_add_u32 v4, s12, v4\ns_cmp_eq_u32 {sKH}, 0\ns_cbranch_scc1 L_red0")
    for mt in range(5): a(f"ds_write_b128 v4, {vr(AC+4*mt,4)} offset:{1024*mt}")
    a("s_waitcnt lgkmcnt(0)\ns_barrier")
    prof_flush()
    a("s_endpgm\nL_red0:")
    a(f"""v_and_b32 v5, 15, {vL}
v_lshrrev_b32 v6, 4, {vL}
v_mul_u32_u24 v5, 2560, v5
v_lshl_add_u32 v5, v6, 3, v5
s_lshl_b32 s12, {sRB}, 2
s_add_u32 s12, s12, {sNT}
s_mul_i32 s12, s12, {16*2560}
s_mul_i32 s13, {sHG}, 160
s_add_u32 s12, s12, s13
s_barrier""")
    for mt in range(5): a(f"ds_read_b128 {vr(8+4*mt,4)}, v4 offset:{1024*mt}")
    for mt in range(5):
        a(f"s_waitcnt lgkmcnt({4-mt})")
        for r in range(4): a(f"v_add_f32 v{AC+4*mt+r}, v{AC+4*mt+r}, v{8+4*mt+r}")
        cvt(32+2*mt, AC+4*mt, AC+4*mt+1); cvt(33+2*mt, AC+4*mt+2, AC+4*mt+3)
        a(f"buffer_store_dwordx2 {vr(32+2*mt,2)}, v5, {rA}, s12 offen offset:{32*mt}")
    if PROF: a("s_waitcnt vmcnt(0)")
    stamp("tail", 23)
    prof_flush()
    a("s_endpgm")

def unit_setup(XG, WG_):
    a(f"v_lshrrev_b32 v24, 4, {vL}\nv_and_b32 v25, 15, {vL}\ns_mul_i32 s12, {sRB}, 81920")
    for y in range(4):
        a(f"v_add_u32 v26, {4*y}, v24\nv_xor_b32 v27, v26, v25\nv_mul_u32_u24 v26, 1280, v26\nv_lshlrev_b32 v27, 4, v27\nv_add3_u32 v{XG+y}, v26, v27, s12")
    a(f"s_mul_i32 s12, {sHG}, 160\ns_and_b32 s12, s12, 0xffffffc0")
    for y in range(3):
        a(f"v_add_u32 v26, {64*y}, {vL}\nv_mul_u32_u24 v27, 43691, v26\nv_lshrrev_b32 v27, 19, v27\nv_mul_u32_u24 v28, 12, v27\nv_sub_u32 v28, v26, v28\nv_mul_u32_u24 v27, 1280, v27\nv_lshlrev_b32 v28, 4, v28\nv_add3_u32 v{WG_+y}, v27, v28, s12")
def unit_issue(XG, WG_, rX, rW, sN, sSlot):
    lx = a.lab("ux"); lw = a.lab("uw"); sk = a.lab("us")
    a(f"s_add_u32 s12, {sU0}, {sN}\ns_cmp_ge_u32 s12, 5\ns_cselect_b32 s13, 5, 0\ns_sub_u32 s12, s12, s13")
    a(f"s_lshl_b32 s13, s12, 8\ns_lshl_b32 s58, {sN}, 14\ns_mov_b32 s59, 0\n{lx}:\ns_cmp_eq_u32 s59, {sKVQ}\ns_cbranch_scc1 {sk}\ns_mov_b32 m0, s58")
    for y in range(4):
        a(f"buffer_load_dwordx4 v{XG+y}, {rX}, s13 offen lds")
        if y < 3: a("s_add_u32 m0, m0, 1024")
    a(f"{sk}:\ns_add_u32 s13, s13, 20480\ns_add_u32 s58, s58, 4096\ns_add_u32 s59, s59, 1\ns_cmp_lt_u32 s59, 4\ns_cbranch_scc1 {lx}")
    a(f"s_mul_i32 s13, s12, 163840\ns_mov_b32 m0, {sSlot}\ns_mov_b32 s59, 0\n{lw}:")
    for y in range(3):
        a(f"buffer_load_dwordx4 v{WG_+y}, {rW}, s13 offen lds\ns_add_u32 m0, m0, 1024")
    a(f"s_add_u32 s13, s13, 20480\ns_add_u32 s59, s59, 1\ns_cmp_lt_u32 s59, 8\ns_cbranch_scc1 {lw}")
    arrive(S_ISS)
    a(f"s_lshl_b32 s13, {sN}, 2\nv_add_u32 v24, s13, {vSY}\ns_waitcnt vmcnt(0)\ns_mov_b64 exec, 1\nds_add_u32 v24, {vONE} offset:{S_LQ}\ns_mov_b64 exec, -1")
def loader():
    a("L_loader:")
    a(f"v_mov_b32 v4, 0\nv_lshl_add_u32 v5, {vL}, 2, {vSY}\nds_write_b32 v5, v4\ns_waitcnt lgkmcnt(0)\ns_barrier\ns_setprio 3\nv_lshlrev_b32 v6, 4, {vL}\nv_lshlrev_b32 v7, 6, {vL}")
    a(f"s_mul_i32 s12, {sHG}, 160")
    for y in range(5):
        a(f"v_add_u32 v8, {64*y}, {vL}\nv_mul_u32_u24 v9, 52429, v8\nv_lshrrev_b32 v9, 19, v9\nv_mul_u32_u24 v16, 10, v9\nv_sub_u32 v16, v8, v16\nv_mul_u32_u24 v9, 1280, v9\nv_lshlrev_b32 v16, 4, v16\nv_add3_u32 v{10+y}, v9, v16, s12")
    unit_setup(32, 36)
    nonce_load()
    srd(40, pWS, WSZ); srd(44, pAX, 2048*1280); srd(48, pWQ, 640*1280)
    nonce()
    wait_ge(S_ISS, 4, 0); wait_ge(S_KVD, 2, 0)
    a(f"s_mov_b32 s14, 2\ns_mov_b32 s15, {WKV}")
    unit_issue(32, 36, rA, rB, "s14", "s15")
    srd(44, pWO, 640*1280)
    for e in range(8): a(f"s_mov_b32 s{80+e}, {SLOTS[e]}")
    sN, sE, sSL, sWOo, sWOl, sPASSL = "s12", "s13", "s14", "s15", "s56", "s57"
    a(f"s_mov_b32 {sN}, 0\ns_mov_b32 {sPASSL}, 0\ns_mov_b32 s68, 8")
    stamp("ld", 1)
    a("L_ld_e:")
    a(f"s_cmp_lt_u32 {sN}, 6\ns_cbranch_scc0 L_ld_wf\ns_cmp_lt_u32 {sN}, 2\ns_cselect_b32 s61, 3, 5")
    wait_min4(S_QB, "s61", 0, 20)
    a(f"s_branch L_ld_nf\nL_ld_wf:\ns_cmp_lt_u32 {sN}, 8\ns_cselect_b32 s61, 5, 1\ns_sub_u32 s61, {sN}, s61")
    wait_min4(S_FREE, "s61", 4, 20)
    a(f"L_ld_nf:\ns_add_u32 {sE}, {sXCD}, {sN}\ns_and_b32 {sE}, {sE}, 7\ns_cmp_lg_u32 {sPASSL}, 0\ns_cbranch_scc1 L_ld_np")
    a(f"s_cmp_gt_u32 {sN}, 1\ns_cbranch_scc1 L_ld_np\ns_cmp_eq_u32 {sN}, 1\ns_cbranch_scc1 L_ld_pa\ns_lshl_b32 s58, {sE}, 11\ns_add_u32 s58, s58, {FKV}\nv_and_b32 v8, 0x7ff, v7")
    poll("v8", ["s58"], 18, 0)
    a(f"s_mul_i32 s58, {sE}, {8*TILE}\ns_add_u32 s58, s58, {KVI}\ns_mov_b32 m0, {SLOT_A}\ns_mov_b32 s59, 0\nL_ld_0:")
    for y in range(3): a(f"buffer_load_dwordx4 v6, {rWS}, s58 offen sc1 lds\ns_add_u32 m0, m0, 1024\ns_add_u32 s58, s58, 1024")
    a("s_add_u32 s59, s59, 1\ns_cmp_lt_u32 s59, 7\ns_cbranch_scc1 L_ld_0\ns_branch L_ld_sig\nL_ld_pa:")
    for k in range(4): a(f"s_mov_b32 s{88+k}, {FKV+4096*k}")
    poll("v7", [f"s{88+k}" for k in range(4)], 40, 1)
    stamp("ld", 13)
    acquire()
    stamp("ld", 14)
    a(f"L_ld_np:\ns_and_b32 m0, {sN}, 7\ns_mul_i32 s58, {sE}, {8*TILE}\ns_movrels_b32 {sSL}, s80\ns_add_u32 s58, s58, {KVI}\ns_mov_b32 m0, {sSL}")
    a("s_mov_b32 s59, 0\nL_ld_1:")
    for y in range(3): a(f"buffer_load_dwordx4 v6, {rWS}, s58 offen{SC} lds\ns_add_u32 m0, m0, 1024\ns_add_u32 s58, s58, 1024")
    a("s_add_u32 s59, s59, 1\ns_cmp_lt_u32 s59, 7\ns_cbranch_scc1 L_ld_1\nL_ld_sig:\ns_waitcnt vmcnt(0)")
    arrive(S_FULL)
    if PROF:
        a(f"s_add_u32 s66, {sN}, 2\ns_and_b32 s66, s66, 31\ns_memrealtime s[64:65]\ns_waitcnt lgkmcnt(0)\ns_mov_b32 m0, s66\nv_writelane_b32 v167, s64, m0")
    a(f"s_add_u32 {sN}, {sN}, 1\ns_cmp_lt_u32 {sN}, s68\ns_cbranch_scc1 L_ld_e")
    a(f"s_sub_u32 s69, s68, 8")
    def wo_chunks(c0, n):
        l = a.lab("wo")
        a(f"s_mov_b32 m0, {WO+5120*c0}\ns_mov_b32 {sWOo}, {c0*32*1280}\ns_mov_b32 s59, 0\n{l}:")
        for y in range(5):
            a(f"buffer_load_dwordx4 v{10+y}, {rA}, {sWOo} offen lds\ns_add_u32 m0, m0, 1024")
        a(f"s_add_u32 {sWOo}, {sWOo}, {32*1280}\ns_add_u32 s59, s59, 1\ns_cmp_lt_u32 s59, {n}\ns_cbranch_scc1 {l}")
    for e, (c0, n) in ((2, (0, 4)), (3, (4, 4)), (4, (8, 4)), (5, (12, 4))):
        a(f"s_add_u32 s61, s69, {e+1}")
        wait_min4(S_FREE, "s61", 8, 20)
        wo_chunks(c0, n)
    wait_ge(S_HB, HB_RG_FREE, 8)
    wo_chunks(16, 4)
    stamp("ld", 11)
    a(f"s_cmp_lg_u32 {sPASSL}, 0\ns_cbranch_scc1 L_ld_b2\ns_cmp_lg_u32 s2, 0\ns_cbranch_scc1 L_ld_b2")
    a(f"s_mov_b32 s58, {XN}"); set_flag("s58", 18)
    a("L_ld_b2:\ns_waitcnt vmcnt(0)\ns_barrier")
    a(f"s_cmp_lg_u32 {sPASSL}, 0\ns_cbranch_scc1 L_ld_o")
    a(f"ds_read_b32 {vT}, {vSY} offset:{S_BAD}\ns_waitcnt lgkmcnt(0)\nv_readfirstlane_b32 s60, {vT}\ns_cmp_eq_u32 s60, 0\ns_cbranch_scc1 L_ld_o")
    a(f"s_mov_b32 {sPASSL}, 1\ns_mov_b32 s68, 24\ns_branch L_ld_e")
    a(f"L_ld_o:\ns_lshl_b32 s58, {sRB}, 3\ns_add_u32 s59, s58, {sHG}\ns_lshl_b32 s59, s59, 6\ns_add_u32 s59, s59, {FO}")
    set_flag("s59", 18)
    a(f"s_lshl_b32 s58, s58, 6\ns_add_u32 s58, s58, {FO}\nv_and_b32 v7, 7, {vL}\nv_lshlrev_b32 v7, 6, v7")
    poll("v7", ["s58"], 18, 0)
    stamp("ld", 12)
    a("s_barrier")
    prof_flush()
    a("s_endpgm")

def tload(dst, off, nq):
    for q in range(nq):
        o = off + 1024*q
        if q % 4 == 0: a(f"s_mov_b32 s59, {o}")
        a(f"buffer_load_dwordx4 {vr(dst+4*q,4)}, v4, {rC}, s59 offen offset:{1024*(q%4)}")
hb_count = [0]
def hbar(sleep=2):
    hb_count[0] += 4
    arrive(S_HB); wait_ge(S_HB, hb_count[0], sleep)
def cmul(dr, di, xr, xi, tc, ts, conj, tmp):
    a(f"v_mul_f32 v{tmp}, v{xi}, v{ts}\nv_mul_f32 v{tmp+1}, v{xr}, v{ts}")
    if not conj: a(f"v_fma_f32 v{dr}, v{xr}, v{tc}, v{tmp}\nv_fma_f32 v{di}, v{xi}, v{tc}, -v{tmp+1}")
    else: a(f"v_fma_f32 v{dr}, v{xr}, v{tc}, -v{tmp}\nv_fma_f32 v{di}, v{xi}, v{tc}, v{tmp+1}")
def helper():
    sP, sS0 = "s10", "s11"
    a(f"L_helper:\ns_setprio 2\ns_sub_u32 {sP}, {sW}, 4\ns_lshl_b32 {sS0}, {sXCD}, 5\ns_add_u32 {sS0}, {sS0}, {sI}")
    a(f"""v_lshlrev_b32 v4, 4, {vL}
v_lshrrev_b32 v5, 4, {vL}
v_and_b32 v6, 15, {vL}
s_and_b32 s56, {sHG}, 1
s_getpc_b64 s[52:53]
L_pc:
s_add_u32 s52, s52, L_tables-L_pc
s_addc_u32 s53, s53, 0
s_mov_b32 s54, {TB.BLOB.nbytes}
s_mov_b32 s55, 0x20000
s_cmp_lt_u32 {sP}, 2
s_cbranch_scc1 L_h_kv""")
    unit_setup(32, 36)
    a("s_waitcnt lgkmcnt(0)")
    nonce_load()
    srd(40, pWS, WSZ); srd(44, pAX, 2048*1280); srd(48, pWQ, 640*1280)
    a(f"s_sub_u32 s14, {sP}, 2\ns_mul_i32 s15, s14, {WB-WA}\ns_add_u32 s15, s15, {WA}")
    wait_ge(S_ISS, sP, 0)
    unit_issue(32, 36, rA, rB, "s14", "s15")
    a(f"s_add_u32 s61, {sP}, 3")
    wait_ge(S_ISS, "s61", 0)
    a(f"s_add_u32 s61, s14, 1\ns_add_u32 s14, s14, 3")
    wait_min4(S_QB, "s61", 0, 20)
    unit_issue(32, 36, rA, rB, "s14", "s15")
    nonce()
    a("s_branch L_h_b1")
    a(f"""L_h_kv:
s_setprio 3
s_lshl_b32 s12, {sKVQ}, 2
s_lshl1_add_u32 s12, {sP}, s12
s_lshl_b32 s13, s12, 2
v_add_u32 v7, s13, v5
v_and_b32 v8, 15, v7
v_xor_b32 v9, v8, v6
v_xor_b32 v8, 4, v9
v_mul_u32_u24 v7, 1280, v7
v_lshlrev_b32 v9, 4, v9
v_lshlrev_b32 v8, 4, v8
s_mul_i32 s13, {sRB}, 81920
v_add3_u32 v9, v7, v9, s13
s_add_u32 s13, s13, 5120
v_add3_u32 v8, v7, v8, s13
s_lshl_b32 s12, s12, 10
s_waitcnt lgkmcnt(0)
s_cmp_eq_u32 s56, 0
s_cselect_b32 s48, s{pWK}, s{pWV}
s_cselect_b32 s49, s{pWK+1}, s{pWV+1}
s_mov_b32 s50, 25600
s_mov_b32 s51, 0x20000""")
    srd(44, pAX, 2048*1280)
    a(f"s_lshl_b32 s13, {sP}, 10\ns_add_u32 m0, s13, {WKV}\ns_mov_b32 s14, {sU0}")
    for y in range(13):
        if y == 12: a(f"s_cmp_lg_u32 {sP}, 0\ns_cbranch_scc1 L_h_nw")
        a(f"buffer_load_dwordx4 v4, {rB}, s13 offen lds")
        if y < 12: a("s_add_u32 m0, m0, 2048\ns_add_u32 s13, s13, 2048")
    a("L_h_nw:")
    for n in range(5):
        a(f"s_add_u32 m0, s12, {X0+16384*n}\ns_lshl_b32 s15, s14, 8\nbuffer_load_dwordx4 v9, {rA}, s15 offen lds\ns_add_u32 m0, m0, 1024\ns_nop 0\nbuffer_load_dwordx4 v8, {rA}, s15 offen lds")
        if n < 4: next_u("s14")
    arrive(S_ISS)
    nonce_load()
    srd(40, pWS, WSZ)
    XK, WK_, FB, AC = 8, 12, [16, 48], 80
    a(f"s_lshl_b32 s12, {sKVQ}, 12\nv_lshlrev_b32 v12, 8, v6\nv_add_u32 v12, s12, v12")
    for k in range(4): a(f"v_or_b32 v13, {4*k}, v5\nv_xor_b32 v13, v13, v6\nv_lshl_add_u32 v{XK+k}, v13, 4, v12")
    a(f"""v_bfe_u32 v12, {vL}, 2, 2
v_lshl_add_u32 v12, v5, 3, v12
v_mul_u32_u24 v12, 40, v12
v_and_b32 v13, 3, {vL}
v_lshlrev_b32 v13, 3, v13
s_cmp_eq_u32 {sP}, 0
s_cselect_b32 s12, -1, 0
s_cselect_b32 s13, 0, 32
s_add_u32 s13, s13, {WKV}
v_and_b32 v13, s12, v13
v_add3_u32 v13, v12, v13, s13
s_mov_b32 s14, {sU0}""")
    for i in range(4): a(f"v_mov_b32 v{AC+i}, 0")
    nonce()
    a("s_waitcnt vmcnt(0)")
    stamp("h", 1)
    arrive(S_KVL)
    wait_ge(S_KVL, 2, 0)
    def kvrd(n):
        f = FB[n & 1]
        a(f"s_mul_i32 s15, s14, 5120\nv_add_u32 v{WK_}, s15, v13")
        for k in range(4):
            if n == 4: a(f"v_add_u32 v{XK+k}, 65536, v{XK+k}")
            a(f"ds_read_b128 {vr(f+8*k,4)}, v{XK+k} offset:{16384*(n%4)}")
            for jh in range(2): a(f"ds_read_b64_tr_b16 {vr(f+8*k+4+2*jh,2)}, v{WK_} offset:{(32*k+4*jh)*40}")
        next_u("s14")
    for typ in range(2):
        if typ == 0: a("s_cmp_lg_u32 s56, 0\ns_cbranch_scc1 L_h_vtype")
        else: a("L_h_vtype:")
        kvrd(0)
        for n in range(5):
            a("s_waitcnt lgkmcnt(0)")
            if n < 4: kvrd(n+1)
            else: arrive(S_KVD)
            f = FB[n & 1]
            for k in range(4):
                if typ == 0: mfma16(AC, f+8*k+4, f+8*k, AC)
                else: mfma16(AC, f+8*k, f+8*k+4, AC)
        a(f"s_lshl_b32 s12, {sRB}, 1\ns_lshr_b32 s13, {sHG}, 2\ns_add_u32 s12, s12, s13\ns_mul_i32 s12, s12, {TILE}\ns_add_u32 s12, s12, {KVI}\ns_and_b32 s13, {sKVQ}, 1")
        a("v_lshrrev_b32 v8, 1, v5\nv_and_b32 v9, 1, v5")
        if typ == 0:
            c = math.log2(math.e)/math.sqrt(20.0)
            import struct
            cb = struct.unpack("<I", struct.pack("<f", c))[0]
            a(f"""s_lshl_b32 s13, s13, 4
v_add_u32 v10, s13, v6
v_lshlrev_b32 v11, 4, v10
v_lshl_add_u32 v11, v8, 9, v11
v_lshl_add_u32 v11, v9, 3, v11
v_lshlrev_b32 v10, 3, v10
v_add_u32 v10, 1024, v10
s_cmp_eq_u32 {sP}, 0
s_cselect_b64 vcc, -1, 0
s_cselect_b64 s[62:63], -1, 0xffff
v_cndmask_b32 v10, v10, v11, vcc""")
            for i in range(4): a(f"v_mul_f32 v{AC+i}, {hex(cb)}, v{AC+i}")
            cvt(14, AC, AC+1); cvt(15, AC+2, AC+3)
            a("s_branch L_h_kvst")
        else:
            a(f"""s_mul_i32 s15, s13, 640
s_add_u32 s15, s15, 1280
v_lshlrev_b32 v10, 4, v6
v_lshl_add_u32 v10, v9, 3, v10
v_add_u32 v10, s15, v10
v_lshl_add_u32 v11, v8, 8, v10
v_lshl_add_u32 v10, v8, 6, v10
v_add_u32 v10, 512, v10
s_cmp_eq_u32 {sP}, 0
s_cselect_b64 vcc, -1, 0
s_mov_b32 s62, 0x00ff00ff
s_cmp_eq_u32 s13, 0
s_cselect_b32 s62, s62, 0x000f000f
s_cmp_eq_u32 {sP}, 0
s_cselect_b32 s62, -1, s62
s_mov_b32 s63, s62
v_cndmask_b32 v10, v10, v11, vcc""")
            cvt(14, AC, AC+1); cvt(15, AC+2, AC+3)
            a(f"""s_cbranch_scc1 L_h_kvst
v_subrev_u32 v8, 4, v6
v_lshl_add_u32 v8, v8, 2, v5
v_lshlrev_b32 v9, 3, v8
v_add_u32 v9, 2560, v9
v_cmp_lt_u32 vcc, 3, v6
v_mov_b32 v11, 0x3f803f80
v_mov_b32 v12, 0x3f80
v_mov_b32 v13, 0
v_cndmask_b32 v10, v10, v9, vcc
v_cndmask_b32 v14, v14, v13, vcc
v_cndmask_b32 v15, v15, v13, vcc
v_cmp_eq_u32 vcc, 0, v8
v_lshrrev_b32 v8, 1, v8
v_cndmask_b32 v14, v14, v11, vcc
v_cndmask_b32 v15, v15, v12, vcc
v_cmp_eq_u32 vcc, 1, v8
s_nop 1
v_cndmask_b32 v14, v14, v11, vcc
v_cndmask_b32 v15, v15, v11, vcc""")
    a(f"L_h_kvst:\ns_mov_b64 exec, s[62:63]\nbuffer_store_dwordx2 v[14:15], v10, {rWS}, s12 offen sc1\ns_mov_b64 exec, -1")
    a(f"s_lshl_b32 s12, {sRB}, 3\ns_add_u32 s12, s12, {sHG}\ns_lshl_b32 s12, s12, 6\ns_add_u32 s12, s12, {FKV}")
    stamp("h", 2)
    a(f"s_waitcnt vmcnt(0)\ns_cmp_eq_u32 {sP}, 0\ns_cbranch_scc1 L_h_kvf")
    arrive(S_KVS)
    a("s_branch L_h_kvd\nL_h_kvf:")
    wait_ge(S_KVS, 1, 0)
    set_flag("s12", 16)
    a("L_h_kvd:")
    a("s_setprio 2")
    stamp("h", 3)
    a("L_h_b1:")
    C32, S32, N32, TW, F20, M3 = 8, 16, 24, 32, 56, 76
    AD, RE, IM, BO, TMP, WRAW = 80, 96, 112, 128, 140, 148
    vGB, vPL = "v7", "v164"
    sI0 = "s71"
    srd(44, pBX, 2048*1280)
    a(f"""s_lshl_b32 s12, {sP}, 8
s_add_u32 s12, s12, {sS0}
s_mul_i32 s12, s12, 1280
v_add_u32 v144, s12, v4
v_add_u32 v145, 1024, v144
v_add_u32 v146, {1024*1280-256}, v144
v_cmp_lt_u32 vcc, 15, {vL}
v_add_u32 v147, 1024, v146
s_mul_i32 s13, {sP}, 2560
s_add_u32 s13, s13, {BX}
v_cndmask_b32 v145, v145, v146, vcc
v_lshl_add_u32 {vGB}, v5, 6, v6
v_lshlrev_b32 {vPL}, 6, {vL}
s_mul_i32 {sI0}, {sP}, 3
s_cmp_eq_u32 {sP}, 3
s_cselect_b32 {sI0}, 8, {sI0}
s_mul_i32 s14, {sRB}, 10
s_mul_i32 s15, {sHG}, 321
s_add_u32 s14, s14, s15
s_and_b32 s70, s14, 1
s_add_u32 s70, s70, {sI0}
s_lshr_b32 s14, s14, 1
s_lshl_b32 s73, s14, 2""")
    wait_ge(S_FULL, 3, 4)
    stamp("h", 4)
    a(f"s_mov_b32 m0, s13\ns_nop 0\nbuffer_load_dwordx4 v144, {rA}, 0 offen lds\ns_add_u32 m0, m0, 1024\ns_nop 0\nbuffer_load_dwordx4 v145, {rA}, 0 offen lds")
    a(f"s_add_u32 m0, m0, 1024\ns_mov_b32 exec_hi, 0\nbuffer_load_dwordx4 v147, {rA}, 0 offen lds\ns_mov_b64 exec, -1")
    tload(C32, TB.OFF["C32_0"], 18)
    a(f"""v_bfe_u32 v144, {vL}, 2, 2
v_lshrrev_b32 v140, 5, {vL}
v_lshl_add_u32 v144, v140, 2, v144
v_mul_u32_u24 v144, 40, v144
v_and_b32 v146, 3, {vL}
v_lshlrev_b32 v146, 3, v146
v_bfe_u32 v147, {vL}, 4, 1
v_cmp_eq_u32 vcc, 1, v147
v_mov_b32 v147, 32
v_and_b32 v141, 31, {vL}
v_cndmask_b32 v146, v146, v147, vcc
v_add3_u32 v144, v144, v146, s13
v_mul_u32_u24 v145, 320, v140
v_add_u32 v145, v145, v141
s_lshl_b32 s12, {sP}, 2
s_add_u32 s12, s12, {ZS}
v_lshl_add_u32 v145, v145, 4, s12
s_lshl_b32 s12, {sP}, 5
v_add_u32 v146, s12, v141
v_mul_u32_u24 v147, {4*1408}, v140
v_lshl_add_u32 v147, v146, 2, v147
v_add_u32 v147, {RG}, v147
v_cmp_lt_u32 s[66:67], 31, {vL}
s_waitcnt vmcnt(18)""")
    for k in range(4):
        for jh in range(2): a(f"ds_read_b64_tr_b16 {vr(AD+4*k+2*jh,2)}, v144 offset:{1280*(k>>1) + 640*(k&1) + 320*jh}")
    a("s_waitcnt vmcnt(0) lgkmcnt(0)")
    stamp("h", 30)
    for k, (tr, ti) in enumerate(((C32, N32), (C32+4, N32+4), (S32, C32), (S32+4, C32+4))):
        mfma32(RE, AD+4*k, tr, RE if k else None); mfma32(IM, AD+4*k, ti, IM if k else None)
    for r in range(12): cmul(RE+r, IM+r, RE+r, IM+r, TW+r, TW+12+r, False, TMP+2*(r & 1))
    for i in range(4): cvt(BO+i, RE+2*i, RE+2*i+1)
    for i in range(4): cvt(BO+4+i, IM+2*i, IM+2*i+1)
    for i in range(2): cvt(BO+8+i, RE+8+2*i, RE+9+2*i)
    for i in range(2): cvt(BO+10+i, IM+8+2*i, IM+9+2*i)
    for k, (tr, ti) in enumerate(((F20, F20+8), (F20+4, F20), (F20+12, F20+16))):
        mfma32(RE, tr, BO+4*k, RE if k else None); mfma32(IM, ti, BO+4*k, IM if k else None)
    for r in range(10):
        cvt(AD+r, RE+r, IM+r); a(f"ds_write_b32 v145, v{AD+r} offset:{512*r}")
    stamp("h", 31)
    hbar()
    stamp("h", 32)
    a("v_mov_b32 v142, 0")
    for q in range(3):
        a(f"v_add_u32 v140, {128*q}, v146\nv_sub_u32 v141, 640, v140\nv_cmp_eq_u32 vcc, 0, v140\nv_cndmask_b32 v141, v141, v142, vcc\nv_cndmask_b32 v140, v140, v141, s[66:67]\nv_lshlrev_b32 v140, 4, v140")
        a(f"ds_read_b128 {vr(BO+4*q,4)}, v140 offset:{ZS}")
    a("s_waitcnt lgkmcnt(0)")
    DD = [RE, IM, AD]
    for q in range(3): mfma32(DD[q], M3, BO+4*q, None)
    a(f"s_mul_i32 s13, {sS0}, {TP}\ns_add_u32 s13, s13, {TBUF}\ns_mul_i32 s14, {sP}, 3072\ns_add_u32 s13, s13, s14\ns_add_u32 s14, s14, {RG}\nv_add_u32 v140, s14, v4")
    for q in range(3):
        if q == 2: a(f"s_cmp_eq_u32 {sP}, 3\ns_cbranch_scc1 L_b1_sk")
        for t in range(4):
            cvt(BO+4*q+t, DD[q]+2*t, DD[q]+2*t+1)
            a(f"ds_write_b32 v147, v{BO+4*q+t} offset:{512*q+1408*t}")
    a("L_b1_sk:")
    hbar()
    for q in range(3): a(f"ds_read_b128 {vr(BO+4*q,4)}, v140 offset:{1024*q}")
    for q in range(3):
        if q == 2: a(f"s_cmp_eq_u32 {sP}, 3\ns_cbranch_scc1 L_b1_s2")
        a(f"s_waitcnt lgkmcnt({2-q})\nbuffer_store_dwordx4 {vr(BO+4*q,4)}, v4, {rWS}, s13 offen offset:{1024*q} sc1")
    a("L_b1_s2:")
    stamp("h", 33)
    G_, TF, TI, H_, F16, TM = 8, 16, 24, 32, 40, 48
    WF, OUTR, AT, R2 = 64, 88, 104, 116
    srd(44, pWR, 2048*642); srd(48, pWI, 2048*642)
    a(f"v_lshrrev_b32 v140, 1, {vL}\nv_mul_u32_u24 v140, {8*642}, v140\nv_and_b32 v141, 1, {vL}\nv_lshl_add_u32 v140, v141, 4, v140")
    a(f"s_mul_i32 s14, {sP}, {64*8*642}\ns_add_u32 s73, s73, s14\ns_add_u32 s74, s73, {32*8*642}\ns_lshl_b32 s14, {sP}, 11\ns_add_u32 s14, s14, {RG}")
    a("s_waitcnt vmcnt(0) lgkmcnt(0)")
    stamp("h", 5)
    hbar()
    a(f"s_cmp_lg_u32 {sP}, 0\ns_cbranch_scc1 L_b2_nf\ns_lshl_b32 s58, s2, 6\ns_add_u32 s58, s58, {FB1}")
    set_flag("s58", 60)
    a(f"L_b2_nf:")
    for z, rr in enumerate((rA, rB)):
        a(f"s_add_u32 m0, s14, {8192*z}\nbuffer_load_dwordx4 v140, {rr}, s73 offen lds\ns_add_u32 m0, m0, 1024\nbuffer_load_dwordx4 v140, {rr}, s74 offen lds")
    a(f"s_lshl_b32 s59, {sHG}, 13\ns_add_u32 s59, s59, {TB.OFF['B2_0']}")
    for q in range(8):
        if q == 4: a("s_add_u32 s59, s59, 4096")
        a(f"buffer_load_dwordx4 {vr(G_+4*q,4)}, v4, {rC}, s59 offen offset:{1024*(q%4)}")
    tload(F16, TB.OFF["F16"], 2)
    for i in range(24): a(f"v_mov_b32 v{WF+i}, 0")
    a(f"s_mul_i32 s14, {sHG}, 1408\ns_mul_i32 s15, {sRB}, 40\ns_add_u32 s14, s14, s15\ns_add_u32 s14, s14, {TBUF}\ns_mul_i32 s15, {sP}, {64*TP}\ns_add_u32 s14, s14, s15\ns_mov_b32 s15, {TP}")
    for y in range(3):
        a(f"v_add_u32 v141, {64*y}, {vL}\nv_mul_u32_u24 v142, 43691, v141\nv_lshrrev_b32 v142, 17, v142\nv_mul_u32_u24 v143, 3, v142\nv_sub_u32 v143, v141, v143\nv_mul_lo_u32 v142, v142, s15\nv_lshl_add_u32 v{144+y}, v143, 4, v142")
    a(f"v_lshlrev_b32 v140, 5, {vGB}\ns_lshl_b32 s15, s70, 1\ns_add_u32 s15, s15, {RG}\nv_add_u32 v140, s15, v140\nv_mul_u32_u24 v147, 48, {vGB}\ns_lshl_b32 s15, {sI0}, 2\ns_add_u32 s15, s15, {RG}\nv_add_u32 v147, s15, v147")
    a("s_waitcnt vmcnt(10)")
    stamp("h", 34)
    hbar()
    for t in range(3):
        for z in range(2):
            for r in range(4): a(f"ds_read_u16_d16_hi v{WF+8*t+4*z+r}, v140 offset:{8192*z+512*r+2*t}")
    a(f"s_cmp_lg_u32 {sP}, 0\ns_cbranch_scc1 L_b2_np")
    for k in range(4): a(f"s_mov_b32 s{72+k}, {FB1+4096*k}")
    poll(vPL, ["s72", "s73", "s74", "s75"], 52, 16)
    stamp("h", 41)
    acquire()
    a("L_b2_np:")
    hbar(8)
    stamp("h", 6)
    a(f"s_mul_i32 s15, {sP}, 3072\ns_add_u32 m0, s15, {RG}")
    for y in range(3):
        a(f"buffer_load_dwordx4 v{144+y}, {rWS}, s14 offen{SC} lds")
        if y < 2: a("s_add_u32 m0, m0, 1024")
    stamp("h", 35)
    a("s_waitcnt vmcnt(0)")
    hbar()
    for t in range(3):
        for r in range(4): a(f"ds_read_b32 v{AT+4*t+r}, v147 offset:{768*r+4*t}")
    a("s_waitcnt lgkmcnt(0)")
    arrive(S_HB)
    stamp("h", 36)
    def tw_stage(tc, ts, conj, first_im):
        for t in range(3):
            re, im = R2+8*t, R2+8*t+4
            for r in range(4):
                c_, s_ = (tc(t)+r, ts(t)+r)
                cmul(re+r, im+r, re+r, im+r, c_, s_, conj, TM+2*(r & 1))
            x, y = (im, re) if first_im else (re, im)
            cvt(AT+4*t, x, x+1); cvt(AT+4*t+1, x+2, x+3); cvt(AT+4*t+2, y, y+1); cvt(AT+4*t+3, y+2, y+3)
    for t in range(3): mfma16(R2+8*t, AT+4*t, G_, None); mfma16(R2+8*t+4, AT+4*t, G_+4, None)
    tw_stage(lambda t: TF, lambda t: TF+4, False, False)
    for t in range(3): mfma16(R2+8*t, F16, AT+4*t, None); mfma16(R2+8*t+4, F16+4, AT+4*t, None)
    tw_stage(lambda t: WF+8*t, lambda t: WF+8*t+4, True, True)
    for t in range(3): mfma16(R2+8*t, AT+4*t, F16+4, None); mfma16(R2+8*t+4, AT+4*t, F16, None)
    tw_stage(lambda t: TI, lambda t: TI+4, True, False)
    for t in range(3): mfma16(R2+8*t, H_, AT+4*t, None); mfma16(R2+8*t+4, H_+4, AT+4*t, None)
    a(f"s_lshl_b32 s14, {sHG}, 5\ns_add_u32 s14, s14, {sRB}\ns_mul_i32 s14, s14, {UP}\ns_mul_i32 s15, {sP}, 3072\ns_add_u32 s14, s14, s15\ns_add_u32 s14, s14, {UBUF}\ns_add_u32 s15, s15, {RG}\nv_add_u32 v140, s15, v4")
    hb_count[0] += 4; wait_ge(S_HB, hb_count[0], 1)
    for t in range(3):
        for r in range(4):
            cvt(OUTR+4*t+r, R2+8*t+r, R2+8*t+4+r)
            a(f"ds_write_b32 v147, v{OUTR+4*t+r} offset:{768*r+4*t}")
    hbar()
    for q in range(3): a(f"ds_read_b128 {vr(OUTR+4*q,4)}, v140 offset:{1024*q}")
    for q in range(3): a(f"s_waitcnt lgkmcnt({2-q})\nbuffer_store_dwordx4 {vr(OUTR+4*q,4)}, v4, {rWS}, s14 offen offset:{1024*q} sc1")
    global HB_RG_FREE
    HB_RG_FREE = hb_count[0] + 4
    stamp("h", 37)
    M3I, I20, TW3 = 32, 36, 56
    BO, DD, AD, RE, IM, AX = 88, [100, 116, 132], 88, 100, 116, 132
    vN, vH = "v148", "v149"
    tload(C32, TB.OFF["C32_0"], 6); tload(M3I, TB.OFF["M3I"], 14)
    a(f"""v_and_b32 {vN}, 31, {vL}
v_lshrrev_b32 {vH}, 5, {vL}
s_lshl_b32 s12, {sP}, 5
v_add_u32 v150, s12, {vN}
s_mul_i32 s13, {sS0}, 48
s_add_u32 s13, s13, {UBUF}
s_add_u32 s14, s13, {32*UP}
s_add_u32 s15, s13, {64*UP}
s_add_u32 s57, s13, {96*UP}
v_mul_u32_u24 v151, {128*UP}, {vH}
v_mov_b32 v165, 640""")
    for q in range(3):
        a(f"""v_add_u32 v152, {128*q}, v150
v_min_u32 v153, 320, v152
v_mul_u32_u24 v154, 52429, v153
v_lshrrev_b32 v154, 19, v154
v_min_u32 v154, 31, v154
v_mul_u32_u24 v154, {UP-40}, v154
v_lshl_add_u32 v153, v153, 2, v151
v_add_u32 v{156+q}, v153, v154
v_sub_u32 v155, 640, v152
v_cmp_lt_u32 vcc, 320, v152
v_cndmask_b32 v152, v152, v155, s[66:67]
v_cndmask_b32 v152, v152, v165, vcc
v_lshlrev_b32 v{160+q}, 4, v152""")
    a("s_waitcnt vmcnt(20)")
    stamp("h", 7)
    hbar()
    a(f"s_cmp_lg_u32 {sP}, 0\ns_cbranch_scc1 L_b3_np\ns_lshl_b32 s58, s2, 6\ns_add_u32 s58, s58, {FB2}")
    set_flag("s58", 100)
    for k in range(4): a(f"s_mov_b32 s{72+k}, {FB2+4096*k}")
    poll(vPL, ["s72", "s73", "s74", "s75"], 104, 16)
    stamp("h", 42)
    acquire()
    a("L_b3_np:")
    hbar(8)
    stamp("h", 8)
    for q in range(3):
        for t in range(4): a(f"buffer_load_dword v{BO+4*q+t}, v{156+q}, {rWS}, {['s13','s14','s15','s57'][t]} offen{SC}")
    stamp("h", 38)
    a("s_waitcnt vmcnt(0)")
    stamp("h", 39)
    for q in range(3): mfma32(DD[q], M3I, BO+4*q, None)
    a(f"v_cmp_eq_u32 s[62:63], 0, {vN}\ns_cmp_eq_u32 {sP}, 0\ns_cbranch_scc1 L_b3_f0\ns_cmp_eq_u32 {sP}, 2\ns_cbranch_scc1 L_b3_f2\ns_branch L_b3_fd")
    for lab, q in (("L_b3_f0", 0), ("L_b3_f2", 2)):
        a(f"{lab}:\ns_nop 11")
        for r in range(8):
            d = DD[q]+r
            a(f"v_mov_b32 v152, v{d}\nv_mov_b32 v153, v{d}\nv_permlane32_swap_b32 v152, v153\nv_add_f32 v152, v152, v153\nv_mul_f32 v152, 0.5, v152\nv_cndmask_b32 v{d}, v{d}, v152, s[62:63]")
        if q == 0: a("s_branch L_b3_fd")
    a("L_b3_fd:\ns_nop 8")
    for q in range(3):
        for t in range(4): cvt(BO+4*q+t, DD[q]+2*t, DD[q]+2*t+1)
        a(f"ds_write_b128 v{160+q}, {vr(BO+4*q,4)} offset:{ZS}")
    a(f"v_mul_u32_u24 v151, 320, {vH}\nv_add_u32 v151, v151, {vN}\ns_lshl_b32 s12, {sP}, 2\ns_add_u32 s12, s12, {ZS}\nv_lshl_add_u32 v151, v151, 4, s12")
    srd(44, pOUT, 2048*2560)
    a(f"s_lshl_b32 s12, {sP}, 8\ns_add_u32 s12, s12, {sS0}\ns_mul_i32 s12, s12, 2560\ns_add_u32 s12, s12, 1280\ns_add_u32 s13, s12, {1024*2560}\nv_mul_u32_u24 v150, 40, {vN}\nv_lshl_add_u32 v150, {vH}, 3, v150")
    hbar()
    stamp("h", 40)
    for r in range(10): a(f"ds_read_b32 v{AD+r}, v151 offset:{512*r}")
    a("s_waitcnt lgkmcnt(0)")
    mfma32(RE, AD, I20, None); mfma32(IM, AD, I20+8, None)
    mfma32(RE, AD+4, I20+4, RE); mfma32(IM, AD+4, I20+12, IM)
    mfma32h(RE, AD+8, I20+16, RE); mfma32h(IM, AD+8, I20+18, IM)
    for r in range(16): cmul(RE+r, IM+r, RE+r, IM+r, TW3+r, TW3+16+r, True, 152+2*(r & 1))
    for i in range(8): cvt(AX+i, RE+2*i, RE+2*i+1)
    for i in range(8): cvt(AX+8+i, IM+2*i, IM+2*i+1)
    for k, (tr, ti) in enumerate(((C32, S32), (C32+4, S32+4), (N32, C32), (N32+4, C32+4))):
        mfma32(RE, AX+4*k, tr, RE if k else None); mfma32(IM, AX+4*k, ti, IM if k else None)
    for z, (D, so) in enumerate(((RE, "s12"), (IM, "s13"))):
        for G in range(3):
            o = 88 + 6*z + 2*G
            cvt(o, D+4*G, D+4*G+1); cvt(o+1, D+4*G+2, D+4*G+3)
            if G == 2: a("s_mov_b32 exec_hi, 0")
            a(f"buffer_store_dwordx2 {vr(o,2)}, v150, {rA}, {so} offen offset:{16*G}")
            if G == 2: a("s_mov_b64 exec, -1")
    stamp("h", 10)
    a("s_waitcnt lgkmcnt(0)\ns_barrier")
    a(f"ds_read_b32 {vT}, {vSY} offset:{S_BAD}\ns_waitcnt lgkmcnt(0)\nv_readfirstlane_b32 s60, {vT}\ns_cmp_eq_u32 s60, 0\ns_cbranch_scc1 L_tail\ns_barrier\ns_branch L_tail")

prologue()
att_head()
att_main()
tail()
helper()
loader()
a("L_exit:\ns_endpgm")
body = a.finish()
hdr = f"""; MQA attention (heads 32 x 20) + output projection, and a 2-D real-FFT filter, in one launch.
; @launch grid=(256,1,1) block=(576,1,1) lds={LDS_BYTES}
.amdgcn_target "amdgcn-amd-amdhsa--gfx950"
.text
.globl {NAME}_kernel
.p2align 8
.type {NAME}_kernel,@function
{NAME}_kernel:
"""
tab = ".p2align 8\n.type L_tables,@object\nL_tables:\n"
B = TB.BLOB
for i in range(0, len(B), 8): tab += ".long " + ",".join(f"0x{x:x}" for x in B[i:i+8]) + "\n"
tab += f".size L_tables, {B.nbytes}\n"
ftr = f""".section .rodata,"a"
.p2align 6
.amdhsa_kernel {NAME}_kernel
  .amdhsa_next_free_vgpr 168
  .amdhsa_next_free_sgpr 96
  .amdhsa_accum_offset 168
  .amdhsa_group_segment_fixed_size 0
  .amdhsa_kernarg_size 88
  .amdhsa_user_sgpr_count 2
  .amdhsa_user_sgpr_kernarg_segment_ptr 1
  .amdhsa_system_sgpr_workgroup_id_x 1
.end_amdhsa_kernel
"""
open(OUT, "w").write(hdr + body + tab + ftr)
print("wrote", OUT, len(hdr + body + tab + ftr), "bytes;", len(a.l), "lines")
```

```python
import sys, math
from asmlib import Asm
import tables as TB

NAME = "concat_heads__grouped_kv_mqa__spectral_gfnet__prompt"
PROF = "--prof" in sys.argv
SC = "" if ("--inv" in sys.argv or "--plain" in sys.argv) else " sc1"
OUT = [a for a in sys.argv[1:] if not a.startswith("--")]
OUT = OUT[0] if OUT else f"cdna_kernels/{NAME}.s"

X0, WA, WB, WKV = 0, 81920, 106496, 137728
SLOT_A, SLOT_B = 141824, 0
ZS, WO, BX, SY = 21504, 32768, 124928, 163328
LDS_BYTES = 163840
S_KVL, S_KVD, S_FULL, S_HB, S_BAD, S_ISS, S_LQ, S_KVS, S_QB, S_FREE = 0, 4, 12, 20, 24, 28, 32, 52, 64, 80
SLOTS = [SLOT_A, SLOT_B] + [WO + 21504*k for k in range(4)] + [SLOT_A, SLOT_B]
TILE = 2688
RG = 118784
TP, UP = 11392, 12416
XN, FKV, FB1, FB2, FO = 0, 0x1000, 0x10000, 0x14000, 0x18000
KVI, OBUF, TBUF, UBUF, WSZ = 0x20000, 0x80000, 0x300000, 0x600000, 0xA00000
PROFOFF = 0xA00000
if PROF: WSZ = 0xB00000
sW, sXCD, sI, sRB, sHG, sU0, sKVQ = "s3", "s4", "s5", "s6", "s7", "s8", "s9"
pAX, pWQ, pWK, pWV, pWO, pBX, pWR, pWI, pOUT, pDBG, pWS = 16, 18, 20, 22, 24, 26, 28, 30, 32, 34, 36
NON = "s[38:39]"
rWS, rA, rB, rC = "s[40:43]", "s[44:47]", "s[48:51]", "s[52:55]"
vL, vSY, vONE, vT = "v0", "v1", "v2", "v3"
a = Asm()
def vr(b, n): return f"v[{b}:{b+n-1}]" if n > 1 else f"v{b}"
def srd(base, ptr, size):
    a(f"s_mov_b32 s{base}, s{ptr}\ns_mov_b32 s{base+1}, s{ptr+1}\ns_mov_b32 s{base+2}, {hex(size)}\ns_mov_b32 s{base+3}, 0x20000")
def arrive(off, va=vSY):
    a(f"s_mov_b64 exec, 1\nds_add_u32 {va}, {vONE} offset:{off}\ns_mov_b64 exec, -1")
def wait_min4(off, tgt, sleep, vq):
    l = a.lab("w"); d = a.lab("wd")
    a(f"{l}:\nds_read_b128 {vr(vq,4)}, {vSY} offset:{off}\ns_waitcnt lgkmcnt(0)\nv_min3_u32 v{vq}, v{vq}, v{vq+1}, v{vq+2}\nv_min_u32 v{vq}, v{vq}, v{vq+3}\nv_readfirstlane_b32 s60, v{vq}\ns_cmp_ge_u32 s60, {tgt}\ns_cbranch_scc1 {d}\n{spin(d)}s_sleep {sleep}\ns_branch {l}\n{d}:")
def spin(d):
    return f"s_cmp_eq_u32 s76, 0\ns_cbranch_scc1 {d}\ns_sub_u32 s76, s76, 1\n"
def wait_ge(off, tgt, sleep=1, va=vSY):
    l = a.lab("w"); d = a.lab("wd")
    a(f"{l}:\nds_read_b32 {vT}, {va} offset:{off}\ns_waitcnt lgkmcnt(0)\nv_readfirstlane_b32 s60, {vT}\ns_cmp_ge_u32 s60, {tgt}\ns_cbranch_scc1 {d}\n{spin(d)}s_sleep {sleep}\ns_branch {l}\n{d}:")
def nonce_load():
    a(f"s_load_dwordx2 s[38:39], s[{pWS}:{pWS+1}], {XN}")
def nonce():
    a("s_waitcnt lgkmcnt(0)")
    a("s_mul_i32 s38, s38, 0x9E3779B1\ns_add_u32 s38, s38, 0x7F4A7C15\ns_mul_i32 s39, s39, 0x2C9277B5\ns_add_u32 s39, s39, 0x5851F42D")
def set_flag(soff, v0_):
    a(f"v_mov_b32 v{v0_}, s38\nv_mov_b32 v{v0_+1}, s39\nv_mov_b32 v{v0_+2}, 0\ns_mov_b64 exec, 1")
    a(f"buffer_store_dwordx2 {vr(v0_,2)}, v{v0_+2}, {rWS}, {soff} offen sc1\ns_mov_b64 exec, -1")
def poll(vaddr, soffs, vd, sleep):
    l = a.lab("p"); d = a.lab("pd")
    a(f"{l}:")
    for k, so in enumerate(soffs): a(f"buffer_load_dwordx2 {vr(vd+2*k,2)}, {vaddr}, {rWS}, {so} offen sc1")
    a("s_waitcnt vmcnt(0)")
    a(f"v_cmp_ne_u64 vcc, {NON}, {vr(vd,2)}")
    for k in range(1, len(soffs)):
        a(f"v_cmp_ne_u64 s[62:63], {NON}, {vr(vd+2*k,2)}\ns_or_b64 vcc, vcc, s[62:63]")
    a(f"s_cbranch_vccz {d}\n{spin(d)}s_sleep {sleep}\ns_branch {l}\n{d}:")
def acquire():
    if "--inv" in sys.argv: a("buffer_inv sc1\ns_waitcnt vmcnt(0)")
prof_n = {}
def stamp(role, idx):
    if not PROF: return
    a(f"s_memrealtime s[64:65]\ns_waitcnt lgkmcnt(0)\nv_writelane_b32 v167, s64, {idx}")
def prof_flush():
    if not PROF: return
    if "--dbgout" in sys.argv:
        l = a.lab("nd")
        a(f"s_or_b32 s64, s2, {sW}\ns_cmp_lg_u32 s64, 0\ns_cbranch_scc1 {l}")
        srd(48, pDBG, 256)
        a("v_readlane_b32 s64, v167, 0\nv_readlane_b32 s65, v167, 20\nv_writelane_b32 v167, s65, 6\nv_readlane_b32 s65, v167, 21\nv_writelane_b32 v167, s65, 7\nv_readlane_b32 s65, v167, 22\nv_writelane_b32 v167, s65, 8\nv_readlane_b32 s65, v167, 23\nv_writelane_b32 v167, s65, 9")
        a(f"v_subrev_u32 v167, s64, v167\nv_lshlrev_b32 v166, 2, {vL}\nbuffer_store_dword v167, v166, {rB}, 0 offen\ns_waitcnt vmcnt(0)\n{l}:")
        return
    a("v_writelane_b32 v167, s76, 63")
    a(f"s_mul_i32 s64, s2, 9\ns_add_u32 s64, s64, {sW}\ns_lshl_b32 s64, s64, 8\ns_add_u32 s64, s64, {PROFOFF}\nv_lshlrev_b32 v166, 2, {vL}")
    a(f"buffer_store_dword v167, v166, {rWS}, s64 offen\ns_waitcnt vmcnt(0)")
def mfma32(d, A, B, C): a(f"v_mfma_f32_32x32x16_bf16 {vr(d,16)}, {vr(A,4)}, {vr(B,4)}, {vr(C,16) if C is not None else 0}")
def mfma32h(d, A, B, C): a(f"v_mfma_f32_32x32x8_bf16 {vr(d,16)}, {vr(A,2)}, {vr(B,2)}, {vr(C,16) if C is not None else 0}")
def mfma16(d, A, B, C): a(f"v_mfma_f32_16x16x32_bf16 {vr(d,4)}, {vr(A,4)}, {vr(B,4)}, {vr(C,4) if C is not None else 0}")
def cvt(d, x, y): a(f"v_cvt_pk_bf16_f32 v{d}, v{x}, v{y}")
def next_u(s):
    a(f"s_add_u32 {s}, {s}, 1\ns_cmp_eq_u32 {s}, 5\ns_cselect_b32 {s}, 0, {s}")

def prologue():
    a(f"""s_cmp_ge_u32 s2, 256
s_cbranch_scc1 L_exit
s_load_dwordx16 s[16:31], s[0:1], 0
s_load_dwordx4 s[32:35], s[0:1], 64
s_load_dwordx2 s[36:37], s[0:1], 80
v_lshrrev_b32 v1, 6, v0
v_and_b32 v0, 63, v0
v_readfirstlane_b32 {sW}, v1
s_and_b32 {sXCD}, s2, 7
s_lshr_b32 {sI}, s2, 3
s_lshr_b32 {sRB}, {sI}, 3
s_lshl2_add_u32 {sRB}, {sXCD}, {sRB}
s_and_b32 {sHG}, {sI}, 7
s_lshr_b32 {sKVQ}, {sHG}, 1
s_and_b32 {sU0}, {sRB}, 3
s_add_u32 {sU0}, {sU0}, {sHG}
s_cmp_ge_u32 {sU0}, 5
s_cselect_b32 s10, 5, 0
s_sub_u32 {sU0}, {sU0}, s10
s_cmp_ge_u32 {sU0}, 5
s_cselect_b32 s10, 5, 0
s_sub_u32 {sU0}, {sU0}, s10
v_mov_b32 {vSY}, {SY}
v_mov_b32 {vONE}, 1
s_mov_b32 s76, 0x40000""")
    if PROF: a("v_mov_b32 v167, 0")
    stamp("all", 0)
    a(f"s_cmp_ge_u32 {sW}, 8\ns_cbranch_scc1 L_loader\ns_barrier\ns_cmp_ge_u32 {sW}, 4\ns_cbranch_scc1 L_helper")

QA1, QA2, QB1, QB2 = 4, 8, 10, 14
OA, OB_, SA, SB, PA, PB = 16, 32, 48, 64, 80, 96
KB1 = [112, 116]; KB2 = [120, 122]; VB = [124, 132]
aK1, aK2, aV0, aV1, vIDX, vSW = 140, 141, 142, 143, 144, "v145"
def att_head():
    XG, WG_, XA, WAa = 148, 151, 154, 162
    AC0, AC1 = 16, 32
    FB = [48, 60, 72]
    sQH, sHP = "s10", "s11"
    a(f"s_and_b32 {sQH}, {sW}, 1\ns_lshr_b32 {sHP}, {sW}, 1\ns_lshl_b32 s12, {sW}, 2\nv_add_u32 {vSW}, s12, {vSY}")
    a("s_waitcnt lgkmcnt(0)")
    srd(40, pWS, WSZ)
    a(f"v_and_b32 v4, 31, {vL}\nv_lshrrev_b32 v5, 5, {vL}\nv_and_b32 v6, 15, {vL}\ns_lshl_b32 s14, {sQH}, 13\nv_lshlrev_b32 v4, 8, v4\nv_add_u32 v4, s14, v4")
    for k in range(8):
        a(f"v_or_b32 v7, {2*k}, v5\nv_xor_b32 v7, v7, v6\nv_lshl_add_u32 v{XA+k}, v7, 4, v4")
    a(f"""v_bfe_u32 v4, {vL}, 4, 1
v_cmp_eq_u32 vcc, 0, v4
v_mov_b32 v7, 0x38282020
v_mov_b32 v8, 0x18081000
v_and_b32 v9, 3, {vL}
v_lshlrev_b32 v9, 3, v9
v_cndmask_b32 v7, v7, v8, vcc
v_bfe_u32 v7, v7, v9, 8
v_mov_b32 v8, 0x48484030
v_bfe_u32 v8, v8, v9, 8
v_bfe_u32 v9, {vL}, 2, 2
v_lshl_add_u32 v9, v5, 3, v9
v_mul_u32_u24 v9, 192, v9
s_and_b32 s14, {sHG}, 1
s_lshl_b32 s14, s14, 5
s_mul_i32 s15, {sHP}, 80
s_add_u32 s14, s14, s15
s_add_u32 s14, s14, {WA}
v_add3_u32 v{WAa}, v9, v7, s14
v_add3_u32 v{WAa+1}, v9, v8, s14""")
    for i in range(32): a(f"v_mov_b32 v{AC0+i}, 0")
    sN = "s12"
    wait_ge(S_KVL, 2)
    stamp("att", 1)
    a(f"s_mov_b32 {sN}, 0\nv_mov_b32 v148, {SY}\nL_qloop:")
    wait_ge(S_LQ, 1, 0, "v148")
    a("v_add_u32 v148, 4, v148")
    def rd(k):
        f = FB[k % 3]
        a(f"ds_read_b128 {vr(f,4)}, v{XA+k}")
        for t in range(2):
            for jh in range(2):
                a(f"ds_read_b64_tr_b16 {vr(f+4+4*t+2*jh,2)}, v{WAa+t} offset:{(16*k+4*jh)*192}")
    rd(0); rd(1)
    for k in range(8):
        if k < 6: rd(k+2); a("s_waitcnt lgkmcnt(10)")
        else: a(f"s_waitcnt lgkmcnt({5 if k == 6 else 1})")
        f = FB[k % 3]
        if k == 6: arrive(S_QB, vSW)
        mfma32(AC0, f+4, f, AC0); mfma32(AC1, f+8, f, AC1)
    for k in range(8): a(f"v_add_u32 v{XA+k}, 16384, v{XA+k}")
    a(f"s_mov_b32 s14, {WB-WA}\ns_cmp_eq_u32 {sN}, 1\ns_cselect_b32 s14, {WKV-WB}, s14\ns_cmp_eq_u32 {sN}, 2\ns_cselect_b32 s14, {(WA-WKV) & 0xffffffff}, s14")
    a(f"v_add_u32 v{WAa}, s14, v{WAa}\nv_add_u32 v{WAa+1}, s14, v{WAa+1}")
    a(f"s_add_u32 {sN}, {sN}, 1\ns_cmp_lt_u32 {sN}, 5\ns_cbranch_scc1 L_qloop")
    stamp("att", 2)
    a(f"""v_lshlrev_b32 v{aK1}, 4, {vL}
v_add_u32 v{aK1}, {SLOT_A}, v{aK1}
v_and_b32 v150, 31, {vL}
v_lshrrev_b32 v151, 5, {vL}
v_lshlrev_b32 v152, 3, v150
v_add_u32 v152, {SLOT_A+1024}, v152
v_mov_b32 v153, {SLOT_A+2560}
v_cmp_lt_u32 s[66:67], 31, {vL}
v_lshlrev_b32 v154, 4, v150
v_lshl_add_u32 v155, v151, 8, v154
v_cndmask_b32 v{aK2}, v152, v153, s[66:67]
v_lshl_add_u32 v156, v151, 6, v154
v_add_u32 v156, 256, v156
v_cmp_lt_u32 vcc, 15, v150
v_and_b32 v157, 27, v150
v_cndmask_b32 v155, v155, v156, vcc
v_add_u32 v155, {SLOT_A+1280}, v155
v_add_u32 v156, 640, v155
v_cmp_eq_u32 vcc, 24, v157
v_mov_b32 v158, {SLOT_A+2560+32}
v_mov_b32 v159, {SLOT_A+2560+16}
v_cndmask_b32 v158, v158, v159, vcc
v_cmp_lt_u32 vcc, 19, v150
v_mov_b32 v{vIDX}, 0xdddd
v_mov_b32 v157, 0
v_cndmask_b32 v{aV0}, v155, v158, vcc
v_cndmask_b32 v{aV1}, v156, v158, vcc""")
    for i in range(4): cvt(QA1+i, AC0+2*i, AC0+2*i+1)
    for i in range(2): cvt(QA2+i, AC0+8+2*i, AC0+9+2*i)
    for i in range(2): cvt(QB1+i, AC0+12+2*i, AC0+13+2*i)
    for i in range(2): cvt(QB1+2+i, AC1+2*i, AC1+1+2*i)
    for i in range(2): cvt(QB2+i, AC1+4+2*i, AC1+5+2*i)
    for r in (QA2, QA2+1, QB2, QB2+1): a(f"v_cndmask_b32 v{r}, v{r}, v157, s[66:67]")

sPB, sEP, sTG, sDK, sDV, sPASS = "s12", "s13", "s14", "s15", "s56", "s57"
def smf(O, V, P): a(f"v_smfmac_f32_32x32x32_bf16 {vr(O,16)}, {vr(V,4)}, {vr(P,8)}, v{vIDX}")
def exps(P, S, i0):
    for i in range(i0, i0+4): a(f"v_exp_f32 v{P+i}, v{S+i}")
DELTA = [(SLOTS[(e+1) % 8] - SLOTS[e]) & 0xffffffff for e in range(8)]
def att_main():
    for e in range(9): a(f"s_mov_b32 s{80+e}, {DELTA[e % 8]}")
    a(f"s_mov_b32 {sPB}, 0\ns_mov_b32 {sPASS}, 0\nL_pass:")
    a(f"s_add_u32 s61, {sPB}, 1")
    for i in range(32): a(f"v_mov_b32 v{OA+i}, 0")
    for i in range(8): a(f"v_mov_b32 v{PB+8+i}, 0")
    for i in range(4): a(f"v_mov_b32 v{VB[1]+4+i}, 0")
    wait_ge(S_FULL, "s61", 0)
    stamp("att", 3)
    for j in range(2):
        a(f"ds_read_b128 {vr(KB1[j],4)}, v{aK1} offset:{j*TILE}\nds_read_b64 {vr(KB2[j],2)}, v{aK2} offset:{j*TILE}")
    a(f"ds_read_b128 {vr(VB[0],4)}, v{aV0}\nds_read_b128 {vr(VB[0]+4,4)}, v{aV1}")
    a(f"s_mov_b32 {sEP}, 0\ns_mov_b32 {sDK}, {DELTA[0]}\ns_waitcnt lgkmcnt(4)")
    mfma32(SA, KB1[0], QA1, None); mfma32h(SA, KB2[0], QA2, SA)
    a(f"s_add_u32 {sTG}, {sPB}, 2\ns_nop 7\ns_nop 1\n.p2align 3\nL_epoch:")
    for j in range(8):
        kb, vb = j & 1, j & 1
        jk = (j+2) % 8; jv = (j+1) % 8
        mfma32(SB, KB1[kb], QB1, None); exps(PA, SA, 0)
        mfma32h(SB, KB2[kb], QB2, SB); exps(PA, SA, 4)
        smf(OB_, VB[1-vb]+4, PB+8); exps(PA, SA, 8)
        a("s_waitcnt lgkmcnt(0)")
        if j == 6:
            a(f"v_readfirstlane_b32 s60, {vT}\nv_add_u32 v{aK1}, {sDK}, v{aK1}\nv_add_u32 v{aK2}, {sDK}, v{aK2}\ns_cmp_lt_u32 s60, {sTG}\ns_cbranch_scc1 L_notfull\nL_full:")
        smf(OA, VB[vb], PA); a(f"ds_read_b128 {vr(KB1[kb],4)}, v{aK1} offset:{jk*TILE}"); exps(PA, SA, 12)
        mfma32(SA, KB1[1-kb], QA1, None); a(f"ds_read_b64 {vr(KB2[kb],2)}, v{aK2} offset:{jk*TILE}"); exps(PB, SB, 0)
        if j == 7: a(f"v_add_u32 v{aV0}, {sDK}, v{aV0}\nv_add_u32 v{aV1}, {sDK}, v{aV1}")
        mfma32h(SA, KB2[1-kb], QA2, SA); a(f"ds_read_b128 {vr(VB[1-vb],4)}, v{aV0} offset:{jv*TILE}"); exps(PB, SB, 4)
        smf(OA, VB[vb]+4, PA+8); a(f"ds_read_b128 {vr(VB[1-vb]+4,4)}, v{aV1} offset:{jv*TILE}")
        if j == 6: arrive(S_FREE, vSW)
        if j == 5: a(f"ds_read_b32 {vT}, {vSY} offset:{S_FULL}")
        exps(PB, SB, 8)
        if j == 7:
            a(f"s_add_u32 {sEP}, {sEP}, 1\ns_mov_b32 m0, {sEP}\ns_cmp_lt_u32 {sEP}, 7\ns_addc_u32 {sTG}, {sTG}, 0\ns_movrels_b32 {sDK}, s80\ns_cmp_lt_u32 {sEP}, 8")
        smf(OB_, VB[vb], PB); exps(PB, SB, 12)
    a("s_cbranch_scc1 L_epoch")
    a("s_nop 1")
    smf(OB_, VB[1]+4, PB+8)
    a("s_waitcnt lgkmcnt(0)")
    stamp("att", 4)
    a(f"s_add_u32 {sPB}, {sPB}, 8")
    a(f"s_lshl_b32 s58, {sRB}, 1\ns_add_u32 s58, s58, s10\ns_lshl_b32 s58, s58, 3\ns_add_u32 s58, s58, {sHG}\ns_mul_i32 s58, s58, 5120\ns_add_u32 s58, s58, {OBUF}")
    a(f"s_lshl_b32 s59, s11, 11\ns_add_u32 s59, s59, s58\ns_lshl_b32 s61, s11, 9\ns_add_u32 s58, s58, s61\ns_add_u32 s58, s58, 4096")
    a(f"v_lshlrev_b32 v146, 4, {vL}\ns_mov_b32 s68, 0x21800000\ns_mov_b32 s69, 0x5d800000")
    a(f"v_rcp_f32 v147, v{OA+12}\nv_cmp_nle_f32 vcc, s68, v{OA+12}\nv_cmp_nge_f32 s[62:63], s69, v{OA+12}\ns_or_b64 s[70:71], vcc, s[62:63]")
    for i in range(12): a(f"v_mul_f32 v{OA+i}, v{OA+i}, v147")
    for i in range(4): cvt(SA+i, OA+2*i, OA+2*i+1)
    for i in range(2): cvt(SA+8+i, OA+8+2*i, OA+9+2*i)
    a(f"buffer_store_dwordx4 {vr(SA,4)}, v146, {rWS}, s59 offen sc1")
    a(f"v_rcp_f32 v147, v{OB_+12}\nv_cmp_nle_f32 vcc, s68, v{OB_+12}\nv_cmp_nge_f32 s[62:63], s69, v{OB_+12}\ns_or_b64 s[70:71], s[70:71], vcc\ns_or_b64 s[70:71], s[70:71], s[62:63]")
    for i in range(12): a(f"v_mul_f32 v{OB_+i}, v{OB_+i}, v147")
    for i in range(4): cvt(SA+4+i, OB_+2*i, OB_+2*i+1)
    for i in range(2): cvt(SA+10+i, OB_+8+2*i, OB_+9+2*i)
    a(f"buffer_store_dwordx4 {vr(SA+4,4)}, v146, {rWS}, s59 offen offset:1024 sc1")
    a(f"s_mov_b32 exec_hi, 0\nbuffer_store_dwordx4 {vr(SA+8,4)}, v146, {rWS}, s58 offen sc1\ns_mov_b64 exec, -1")
    a(f"s_cmp_lg_u32 {sPASS}, 0\ns_cbranch_scc1 L_odone\ns_cmp_eq_u64 s[70:71], 0\ns_cbranch_scc1 L_odone")
    arrive(S_BAD)
    a("L_odone:\ns_waitcnt vmcnt(0) lgkmcnt(0)")
    stamp("att", 5)
    a("s_barrier")
    a(f"s_cmp_lg_u32 {sPASS}, 0\ns_cbranch_scc1 L_tail")
    a(f"ds_read_b32 {vT}, {vSY} offset:{S_BAD}\ns_waitcnt lgkmcnt(0)\nv_readfirstlane_b32 s60, {vT}\ns_cmp_eq_u32 s60, 0\ns_cbranch_scc1 L_tail")
    MA, MB = 146, 147
    a(f"s_mov_b32 {sPASS}, 1\nv_mov_b32 v{MA}, 0xff800000\nv_mov_b32 v{MB}, 0xff800000\ns_mov_b32 {sEP}, 0\nL_mx_e:\ns_mov_b32 m0, {sEP}\ns_nop 0\ns_movrels_b32 {sDK}, s80\ns_sub_u32 {sDK}, {sDK}, {8*TILE}")
    a(f"s_add_u32 s61, {sPB}, {sEP}\ns_add_u32 s61, s61, 1")
    wait_ge(S_FULL, "s61")
    a(f"s_mov_b32 {sTG}, 0\nL_mx_t:")
    a(f"ds_read_b128 {vr(KB1[0],4)}, v{aK1}\nds_read_b64 {vr(KB2[0],2)}, v{aK2}\ns_waitcnt lgkmcnt(0)")
    mfma32(SA, KB1[0], QA1, None); mfma32h(SA, KB2[0], QA2, SA)
    mfma32(SB, KB1[0], QB1, None); mfma32h(SB, KB2[0], QB2, SB)
    for i in range(8): a(f"v_max3_f32 v{MA}, v{MA}, v{SA+2*i}, v{SA+2*i+1}")
    for i in range(8): a(f"v_max3_f32 v{MB}, v{MB}, v{SB+2*i}, v{SB+2*i+1}")
    a(f"v_add_u32 v{aK1}, {TILE}, v{aK1}\nv_add_u32 v{aK2}, {TILE}, v{aK2}\ns_add_u32 {sTG}, {sTG}, 1\ns_cmp_lt_u32 {sTG}, 8\ns_cbranch_scc1 L_mx_t")
    arrive(S_FREE, vSW)
    a(f"v_add_u32 v{aK1}, {sDK}, v{aK1}\nv_add_u32 v{aK2}, {sDK}, v{aK2}")
    a(f"s_add_u32 {sEP}, {sEP}, 1\ns_cmp_lt_u32 {sEP}, 8\ns_cbranch_scc1 L_mx_e\ns_add_u32 {sPB}, {sPB}, 8")
    for M, Q2 in ((MA, QA2), (MB, QB2)):
        a(f"""v_mov_b32 v148, v{M}
v_permlane32_swap_b32 v{M}, v148
v_max_f32 v{M}, v{M}, v148
v_sub_f32 v{M}, 0, v{M}
v_and_b32 v148, 0xffff0000, v{M}
v_sub_f32 v{M}, v{M}, v148
v_and_b32 v149, 0xffff0000, v{M}
v_sub_f32 v{M}, v{M}, v149
v_lshrrev_b32 v148, 16, v148
v_or_b32 v148, v148, v149
v_lshrrev_b32 v149, 16, v{M}
v_cndmask_b32 v{Q2}, v{Q2}, v148, s[66:67]
v_cndmask_b32 v{Q2+1}, v{Q2+1}, v149, s[66:67]""")
    a("s_branch L_pass")
    a("L_notfull:"); wait_ge(S_FULL, sTG, 0); a("s_branch L_full")

def tail():
    AF, BF, AC, vA0, vA1, vO0, vO1 = 4, 104, 144, 164, 165, 100+64+2, 3
    a("L_tail:\ns_setprio 0")
    sNT, sKH = "s10", "s11"
    a(f"s_and_b32 {sNT}, {sW}, 3\ns_lshr_b32 {sKH}, {sW}, 2")
    a(f"""v_lshrrev_b32 v144, 4, {vL}
v_bfe_u32 v145, {vL}, 2, 2
v_and_b32 v146, 3, {vL}
v_lshrrev_b32 v147, 1, v144
v_and_b32 v148, 1, v144
v_mul_u32_u24 v149, 20, v147
v_lshl_add_u32 v149, v148, 2, v149
v_add_u32 v149, v149, v145
v_mul_u32_u24 v149, 160, v149
v_mul_u32_u24 v150, 80, v147
v_mul_u32_u24 v151, 40, v148
v_add3_u32 v150, v150, v151, v145
v_mul_u32_u24 v150, 160, v150
s_mul_i32 s12, {sKH}, {320*160}
s_add_u32 s12, s12, {WO}
v_lshlrev_b32 v146, 3, v146
v_add3_u32 v{vA0}, v149, v146, s12
s_add_u32 s12, s12, {16*160}
v_add3_u32 v{vA1}, v150, v146, s12""")
    def aread(st, dst):
        for mt in range(5):
            for jh in range(2):
                if st < 8: ad, off = vA0, ((st >> 1)*80 + (st & 1)*40 + 8*jh)*160 + 32*mt
                else: ad, off = vA1, ((st-8)*160 + 20*jh)*160 + 32*mt
                a(f"ds_read_b64_tr_b16 {vr(dst+4*mt+2*jh,2)}, v{ad} offset:{off}")
    for st in range(5): aread(st, AF+20*st)
    a(f"""v_and_b32 v145, 15, {vL}
v_lshlrev_b32 v145, 4, v145
v_lshl_add_u32 v145, v148, 9, v145
v_lshl_add_u32 v166, v147, 10, v145
v_mul_u32_u24 v147, 5120, v147
v_add_u32 {vT}, v147, v145
s_lshl_b32 s12, {sRB}, 1
s_lshr_b32 s13, {sNT}, 1
s_add_u32 s12, s12, s13
s_lshl_b32 s12, s12, 1
s_add_u32 s12, s12, {sKH}
s_mul_i32 s12, s12, 20480
s_and_b32 s13, {sNT}, 1
s_lshl_b32 s13, s13, 8
s_add_u32 s12, s12, s13
s_add_u32 s12, s12, {OBUF}""")
    for x in range(1, 4): a(f"s_add_u32 s{12+x}, s12, {5120*x}")
    a("s_add_u32 s58, s12, 4096\ns_add_u32 s59, s14, 4096")
    srd(44, pOUT, 2048*2560)
    for i in range(20): a(f"v_mov_b32 v{AC+i}, 0")
    a("s_waitcnt lgkmcnt(0)")
    stamp("tail", 20)
    a("s_barrier")
    stamp("tail", 21)
    for st in range(8): a(f"buffer_load_dwordx4 {vr(BF+4*st,4)}, v166, {rWS}, s{12+(st>>1)} offen offset:{2048*(st&1)} sc1")
    for st in range(2): a(f"buffer_load_dwordx4 {vr(BF+32+4*st,4)}, {vT}, {rWS}, s{58+st} offen sc1")
    for st in range(10):
        a(f"s_waitcnt vmcnt({9-st})")
        if st >= 5: a(f"s_waitcnt lgkmcnt({min(15, 10*(9-st))})")
        af = AF + 20*(st % 5)
        for mt in range(5): mfma16(AC+4*mt, af+4*mt, BF+4*st, AC+4*mt)
        if st < 5: aread(st+5, af)
    stamp("tail", 22)
    a(f"s_mul_i32 s12, {sNT}, 5120\nv_lshlrev_b32 v4, 4, {vL}\nv_add_u32 v4, s12, v4\ns_cmp_eq_u32 {sKH}, 0\ns_cbranch_scc1 L_red0")
    for mt in range(5): a(f"ds_write_b128 v4, {vr(AC+4*mt,4)} offset:{1024*mt}")
    a("s_waitcnt lgkmcnt(0)\ns_barrier")
    prof_flush()
    a("s_endpgm\nL_red0:")
    a(f"""v_and_b32 v5, 15, {vL}
v_lshrrev_b32 v6, 4, {vL}
v_mul_u32_u24 v5, 2560, v5
v_lshl_add_u32 v5, v6, 3, v5
s_lshl_b32 s12, {sRB}, 2
s_add_u32 s12, s12, {sNT}
s_mul_i32 s12, s12, {16*2560}
s_mul_i32 s13, {sHG}, 160
s_add_u32 s12, s12, s13
s_barrier""")
    for mt in range(5): a(f"ds_read_b128 {vr(8+4*mt,4)}, v4 offset:{1024*mt}")
    for mt in range(5):
        a(f"s_waitcnt lgkmcnt({4-mt})")
        for r in range(4): a(f"v_add_f32 v{AC+4*mt+r}, v{AC+4*mt+r}, v{8+4*mt+r}")
        cvt(32+2*mt, AC+4*mt, AC+4*mt+1); cvt(33+2*mt, AC+4*mt+2, AC+4*mt+3)
        a(f"buffer_store_dwordx2 {vr(32+2*mt,2)}, v5, {rA}, s12 offen offset:{32*mt}")
    if PROF: a("s_waitcnt vmcnt(0)")
    stamp("tail", 23)
    prof_flush()
    a("s_endpgm")

def unit_setup(XG, WG_):
    a(f"v_lshrrev_b32 v24, 4, {vL}\nv_and_b32 v25, 15, {vL}\ns_mul_i32 s12, {sRB}, 81920")
    for y in range(4):
        a(f"v_add_u32 v26, {4*y}, v24\nv_xor_b32 v27, v26, v25\nv_mul_u32_u24 v26, 1280, v26\nv_lshlrev_b32 v27, 4, v27\nv_add3_u32 v{XG+y}, v26, v27, s12")
    a(f"s_mul_i32 s12, {sHG}, 160\ns_and_b32 s12, s12, 0xffffffc0")
    for y in range(3):
        a(f"v_add_u32 v26, {64*y}, {vL}\nv_mul_u32_u24 v27, 43691, v26\nv_lshrrev_b32 v27, 19, v27\nv_mul_u32_u24 v28, 12, v27\nv_sub_u32 v28, v26, v28\nv_mul_u32_u24 v27, 1280, v27\nv_lshlrev_b32 v28, 4, v28\nv_add3_u32 v{WG_+y}, v27, v28, s12")
def unit_issue(XG, WG_, rX, rW, sN, sSlot):
    lx = a.lab("ux"); lw = a.lab("uw"); sk = a.lab("us")
    a(f"s_add_u32 s12, {sU0}, {sN}\ns_cmp_ge_u32 s12, 5\ns_cselect_b32 s13, 5, 0\ns_sub_u32 s12, s12, s13")
    a(f"s_lshl_b32 s13, s12, 8\ns_lshl_b32 s58, {sN}, 14\ns_mov_b32 s59, 0\n{lx}:\ns_cmp_eq_u32 s59, {sKVQ}\ns_cbranch_scc1 {sk}\ns_mov_b32 m0, s58")
    for y in range(4):
        a(f"buffer_load_dwordx4 v{XG+y}, {rX}, s13 offen lds")
        if y < 3: a("s_add_u32 m0, m0, 1024")
    a(f"{sk}:\ns_add_u32 s13, s13, 20480\ns_add_u32 s58, s58, 4096\ns_add_u32 s59, s59, 1\ns_cmp_lt_u32 s59, 4\ns_cbranch_scc1 {lx}")
    a(f"s_mul_i32 s13, s12, 163840\ns_mov_b32 m0, {sSlot}\ns_mov_b32 s59, 0\n{lw}:")
    for y in range(3):
        a(f"buffer_load_dwordx4 v{WG_+y}, {rW}, s13 offen lds\ns_add_u32 m0, m0, 1024")
    a(f"s_add_u32 s13, s13, 20480\ns_add_u32 s59, s59, 1\ns_cmp_lt_u32 s59, 8\ns_cbranch_scc1 {lw}")
    arrive(S_ISS)
    a(f"s_lshl_b32 s13, {sN}, 2\nv_add_u32 v24, s13, {vSY}\ns_waitcnt vmcnt(0)\ns_mov_b64 exec, 1\nds_add_u32 v24, {vONE} offset:{S_LQ}\ns_mov_b64 exec, -1")
def loader():
    a("L_loader:")
    a(f"v_mov_b32 v4, 0\nv_lshl_add_u32 v5, {vL}, 2, {vSY}\nds_write_b32 v5, v4\ns_waitcnt lgkmcnt(0)\ns_barrier\ns_setprio 3\nv_lshlrev_b32 v6, 4, {vL}\nv_lshlrev_b32 v7, 6, {vL}")
    a(f"s_mul_i32 s12, {sHG}, 160")
    for y in range(5):
        a(f"v_add_u32 v8, {64*y}, {vL}\nv_mul_u32_u24 v9, 52429, v8\nv_lshrrev_b32 v9, 19, v9\nv_mul_u32_u24 v16, 10, v9\nv_sub_u32 v16, v8, v16\nv_mul_u32_u24 v9, 1280, v9\nv_lshlrev_b32 v16, 4, v16\nv_add3_u32 v{10+y}, v9, v16, s12")
    unit_setup(32, 36)
    nonce_load()
    srd(40, pWS, WSZ); srd(44, pAX, 2048*1280); srd(48, pWQ, 640*1280)
    nonce()
    wait_ge(S_ISS, 4, 0); wait_ge(S_KVD, 2, 0)
    a(f"s_mov_b32 s14, 2\ns_mov_b32 s15, {WKV}")
    unit_issue(32, 36, rA, rB, "s14", "s15")
    srd(44, pWO, 640*1280)
    for e in range(8): a(f"s_mov_b32 s{80+e}, {SLOTS[e]}")
    sN, sE, sSL, sWOo, sWOl, sPASSL = "s12", "s13", "s14", "s15", "s56", "s57"
    a(f"s_mov_b32 {sN}, 0\ns_mov_b32 {sPASSL}, 0\ns_mov_b32 s68, 8")
    stamp("ld", 1)
    a("L_ld_e:")
    a(f"s_cmp_lt_u32 {sN}, 6\ns_cbranch_scc0 L_ld_wf\ns_cmp_lt_u32 {sN}, 2\ns_cselect_b32 s61, 3, 5")
    wait_min4(S_QB, "s61", 0, 20)
    a(f"s_branch L_ld_nf\nL_ld_wf:\ns_cmp_lt_u32 {sN}, 8\ns_cselect_b32 s61, 5, 1\ns_sub_u32 s61, {sN}, s61")
    wait_min4(S_FREE, "s61", 4, 20)
    a(f"L_ld_nf:\ns_add_u32 {sE}, {sXCD}, {sN}\ns_and_b32 {sE}, {sE}, 7\ns_cmp_lg_u32 {sPASSL}, 0\ns_cbranch_scc1 L_ld_np")
    a(f"s_cmp_gt_u32 {sN}, 1\ns_cbranch_scc1 L_ld_np\ns_cmp_eq_u32 {sN}, 1\ns_cbranch_scc1 L_ld_pa\ns_lshl_b32 s58, {sE}, 11\ns_add_u32 s58, s58, {FKV}\nv_and_b32 v8, 0x7ff, v7")
    poll("v8", ["s58"], 18, 0)
    a(f"s_mul_i32 s58, {sE}, {8*TILE}\ns_add_u32 s58, s58, {KVI}\ns_mov_b32 m0, {SLOT_A}\ns_mov_b32 s59, 0\nL_ld_0:")
    for y in range(3): a(f"buffer_load_dwordx4 v6, {rWS}, s58 offen sc1 lds\ns_add_u32 m0, m0, 1024\ns_add_u32 s58, s58, 1024")
    a("s_add_u32 s59, s59, 1\ns_cmp_lt_u32 s59, 7\ns_cbranch_scc1 L_ld_0\ns_branch L_ld_sig\nL_ld_pa:")
    for k in range(4): a(f"s_mov_b32 s{88+k}, {FKV+4096*k}")
    poll("v7", [f"s{88+k}" for k in range(4)], 40, 1)
    stamp("ld", 13)
    acquire()
    stamp("ld", 14)
    a(f"L_ld_np:\ns_and_b32 m0, {sN}, 7\ns_mul_i32 s58, {sE}, {8*TILE}\ns_movrels_b32 {sSL}, s80\ns_add_u32 s58, s58, {KVI}\ns_mov_b32 m0, {sSL}")
    a("s_mov_b32 s59, 0\nL_ld_1:")
    for y in range(3): a(f"buffer_load_dwordx4 v6, {rWS}, s58 offen{SC} lds\ns_add_u32 m0, m0, 1024\ns_add_u32 s58, s58, 1024")
    a("s_add_u32 s59, s59, 1\ns_cmp_lt_u32 s59, 7\ns_cbranch_scc1 L_ld_1\nL_ld_sig:\ns_waitcnt vmcnt(0)")
    arrive(S_FULL)
    if PROF:
        a(f"s_add_u32 s66, {sN}, 2\ns_and_b32 s66, s66, 31\ns_memrealtime s[64:65]\ns_waitcnt lgkmcnt(0)\ns_mov_b32 m0, s66\nv_writelane_b32 v167, s64, m0")
    a(f"s_add_u32 {sN}, {sN}, 1\ns_cmp_lt_u32 {sN}, s68\ns_cbranch_scc1 L_ld_e")
    a(f"s_sub_u32 s69, s68, 8")
    def wo_chunks(c0, n):
        l = a.lab("wo")
        a(f"s_mov_b32 m0, {WO+5120*c0}\ns_mov_b32 {sWOo}, {c0*32*1280}\ns_mov_b32 s59, 0\n{l}:")
        for y in range(5):
            a(f"buffer_load_dwordx4 v{10+y}, {rA}, {sWOo} offen lds\ns_add_u32 m0, m0, 1024")
        a(f"s_add_u32 {sWOo}, {sWOo}, {32*1280}\ns_add_u32 s59, s59, 1\ns_cmp_lt_u32 s59, {n}\ns_cbranch_scc1 {l}")
    for e, (c0, n) in ((2, (0, 4)), (3, (4, 4)), (4, (8, 4)), (5, (12, 4))):
        a(f"s_add_u32 s61, s69, {e+1}")
        wait_min4(S_FREE, "s61", 8, 20)
        wo_chunks(c0, n)
    wait_ge(S_HB, HB_RG_FREE, 8)
    wo_chunks(16, 4)
    stamp("ld", 11)
    a(f"s_cmp_lg_u32 {sPASSL}, 0\ns_cbranch_scc1 L_ld_b2\ns_cmp_lg_u32 s2, 0\ns_cbranch_scc1 L_ld_b2")
    a(f"s_mov_b32 s58, {XN}"); set_flag("s58", 18)
    a("L_ld_b2:\ns_waitcnt vmcnt(0)\ns_barrier")
    a(f"s_cmp_lg_u32 {sPASSL}, 0\ns_cbranch_scc1 L_ld_o")
    a(f"ds_read_b32 {vT}, {vSY} offset:{S_BAD}\ns_waitcnt lgkmcnt(0)\nv_readfirstlane_b32 s60, {vT}\ns_cmp_eq_u32 s60, 0\ns_cbranch_scc1 L_ld_o")
    a(f"s_mov_b32 {sPASSL}, 1\ns_mov_b32 s68, 24\ns_branch L_ld_e")
    a(f"L_ld_o:\ns_lshl_b32 s58, {sRB}, 3\ns_add_u32 s59, s58, {sHG}\ns_lshl_b32 s59, s59, 6\ns_add_u32 s59, s59, {FO}")
    set_flag("s59", 18)
    a(f"s_lshl_b32 s58, s58, 6\ns_add_u32 s58, s58, {FO}\nv_and_b32 v7, 7, {vL}\nv_lshlrev_b32 v7, 6, v7")
    poll("v7", ["s58"], 18, 0)
    stamp("ld", 12)
    a("s_barrier")
    prof_flush()
    a("s_endpgm")

def tload(dst, off, nq):
    for q in range(nq):
        o = off + 1024*q
        if q % 4 == 0: a(f"s_mov_b32 s59, {o}")
        a(f"buffer_load_dwordx4 {vr(dst+4*q,4)}, v4, {rC}, s59 offen offset:{1024*(q%4)}")
hb_count = [0]
def hbar(sleep=2):
    hb_count[0] += 4
    arrive(S_HB); wait_ge(S_HB, hb_count[0], sleep)
def cmul(dr, di, xr, xi, tc, ts, conj, tmp):
    a(f"v_mul_f32 v{tmp}, v{xi}, v{ts}\nv_mul_f32 v{tmp+1}, v{xr}, v{ts}")
    if not conj: a(f"v_fma_f32 v{dr}, v{xr}, v{tc}, v{tmp}\nv_fma_f32 v{di}, v{xi}, v{tc}, -v{tmp+1}")
    else: a(f"v_fma_f32 v{dr}, v{xr}, v{tc}, -v{tmp}\nv_fma_f32 v{di}, v{xi}, v{tc}, v{tmp+1}")
def helper():
    sP, sS0 = "s10", "s11"
    a(f"L_helper:\ns_setprio 2\ns_sub_u32 {sP}, {sW}, 4\ns_lshl_b32 {sS0}, {sXCD}, 5\ns_add_u32 {sS0}, {sS0}, {sI}")
    a(f"""v_lshlrev_b32 v4, 4, {vL}
v_lshrrev_b32 v5, 4, {vL}
v_and_b32 v6, 15, {vL}
s_and_b32 s56, {sHG}, 1
s_getpc_b64 s[52:53]
L_pc:
s_add_u32 s52, s52, L_tables-L_pc
s_addc_u32 s53, s53, 0
s_mov_b32 s54, {TB.BLOB.nbytes}
s_mov_b32 s55, 0x20000
s_cmp_lt_u32 {sP}, 2
s_cbranch_scc1 L_h_kv""")
    unit_setup(32, 36)
    a("s_waitcnt lgkmcnt(0)")
    nonce_load()
    srd(40, pWS, WSZ); srd(44, pAX, 2048*1280); srd(48, pWQ, 640*1280)
    a(f"s_sub_u32 s14, {sP}, 2\ns_mul_i32 s15, s14, {WB-WA}\ns_add_u32 s15, s15, {WA}")
    wait_ge(S_ISS, sP, 0)
    unit_issue(32, 36, rA, rB, "s14", "s15")
    a(f"s_add_u32 s61, {sP}, 3")
    wait_ge(S_ISS, "s61", 0)
    a(f"s_add_u32 s61, s14, 1\ns_add_u32 s14, s14, 3")
    wait_min4(S_QB, "s61", 0, 20)
    unit_issue(32, 36, rA, rB, "s14", "s15")
    nonce()
    a("s_branch L_h_b1")
    a(f"""L_h_kv:
s_setprio 3
s_lshl_b32 s12, {sKVQ}, 2
s_lshl1_add_u32 s12, {sP}, s12
s_lshl_b32 s13, s12, 2
v_add_u32 v7, s13, v5
v_and_b32 v8, 15, v7
v_xor_b32 v9, v8, v6
v_xor_b32 v8, 4, v9
v_mul_u32_u24 v7, 1280, v7
v_lshlrev_b32 v9, 4, v9
v_lshlrev_b32 v8, 4, v8
s_mul_i32 s13, {sRB}, 81920
v_add3_u32 v9, v7, v9, s13
s_add_u32 s13, s13, 5120
v_add3_u32 v8, v7, v8, s13
s_lshl_b32 s12, s12, 10
s_waitcnt lgkmcnt(0)
s_cmp_eq_u32 s56, 0
s_cselect_b32 s48, s{pWK}, s{pWV}
s_cselect_b32 s49, s{pWK+1}, s{pWV+1}
s_mov_b32 s50, 25600
s_mov_b32 s51, 0x20000""")
    srd(44, pAX, 2048*1280)
    a(f"s_lshl_b32 s13, {sP}, 10\ns_add_u32 m0, s13, {WKV}\ns_mov_b32 s14, {sU0}")
    for y in range(13):
        if y == 12: a(f"s_cmp_lg_u32 {sP}, 0\ns_cbranch_scc1 L_h_nw")
        a(f"buffer_load_dwordx4 v4, {rB}, s13 offen lds")
        if y < 12: a("s_add_u32 m0, m0, 2048\ns_add_u32 s13, s13, 2048")
    a("L_h_nw:")
    for n in range(5):
        a(f"s_add_u32 m0, s12, {X0+16384*n}\ns_lshl_b32 s15, s14, 8\nbuffer_load_dwordx4 v9, {rA}, s15 offen lds\ns_add_u32 m0, m0, 1024\ns_nop 0\nbuffer_load_dwordx4 v8, {rA}, s15 offen lds")
        if n < 4: next_u("s14")
    arrive(S_ISS)
    nonce_load()
    srd(40, pWS, WSZ)
    XK, WK_, FB, AC = 8, 12, [16, 48], 80
    a(f"s_lshl_b32 s12, {sKVQ}, 12\nv_lshlrev_b32 v12, 8, v6\nv_add_u32 v12, s12, v12")
    for k in range(4): a(f"v_or_b32 v13, {4*k}, v5\nv_xor_b32 v13, v13, v6\nv_lshl_add_u32 v{XK+k}, v13, 4, v12")
    a(f"""v_bfe_u32 v12, {vL}, 2, 2
v_lshl_add_u32 v12, v5, 3, v12
v_mul_u32_u24 v12, 40, v12
v_and_b32 v13, 3, {vL}
v_lshlrev_b32 v13, 3, v13
s_cmp_eq_u32 {sP}, 0
s_cselect_b32 s12, -1, 0
s_cselect_b32 s13, 0, 32
s_add_u32 s13, s13, {WKV}
v_and_b32 v13, s12, v13
v_add3_u32 v13, v12, v13, s13
s_mov_b32 s14, {sU0}""")
    for i in range(4): a(f"v_mov_b32 v{AC+i}, 0")
    nonce()
    a("s_waitcnt vmcnt(0)")
    stamp("h", 1)
    arrive(S_KVL)
    wait_ge(S_KVL, 2, 0)
    def kvrd(n):
        f = FB[n & 1]
        a(f"s_mul_i32 s15, s14, 5120\nv_add_u32 v{WK_}, s15, v13")
        for k in range(4):
            if n == 4: a(f"v_add_u32 v{XK+k}, 65536, v{XK+k}")
            a(f"ds_read_b128 {vr(f+8*k,4)}, v{XK+k} offset:{16384*(n%4)}")
            for jh in range(2): a(f"ds_read_b64_tr_b16 {vr(f+8*k+4+2*jh,2)}, v{WK_} offset:{(32*k+4*jh)*40}")
        next_u("s14")
    for typ in range(2):
        if typ == 0: a("s_cmp_lg_u32 s56, 0\ns_cbranch_scc1 L_h_vtype")
        else: a("L_h_vtype:")
        kvrd(0)
        for n in range(5):
            a("s_waitcnt lgkmcnt(0)")
            if n < 4: kvrd(n+1)
            else: arrive(S_KVD)
            f = FB[n & 1]
            for k in range(4):
                if typ == 0: mfma16(AC, f+8*k+4, f+8*k, AC)
                else: mfma16(AC, f+8*k, f+8*k+4, AC)
        a(f"s_lshl_b32 s12, {sRB}, 1\ns_lshr_b32 s13, {sHG}, 2\ns_add_u32 s12, s12, s13\ns_mul_i32 s12, s12, {TILE}\ns_add_u32 s12, s12, {KVI}\ns_and_b32 s13, {sKVQ}, 1")
        a("v_lshrrev_b32 v8, 1, v5\nv_and_b32 v9, 1, v5")
        if typ == 0:
            c = math.log2(math.e)/math.sqrt(20.0)
            import struct
            cb = struct.unpack("<I", struct.pack("<f", c))[0]
            a(f"""s_lshl_b32 s13, s13, 4
v_add_u32 v10, s13, v6
v_lshlrev_b32 v11, 4, v10
v_lshl_add_u32 v11, v8, 9, v11
v_lshl_add_u32 v11, v9, 3, v11
v_lshlrev_b32 v10, 3, v10
v_add_u32 v10, 1024, v10
s_cmp_eq_u32 {sP}, 0
s_cselect_b64 vcc, -1, 0
s_cselect_b64 s[62:63], -1, 0xffff
v_cndmask_b32 v10, v10, v11, vcc""")
            for i in range(4): a(f"v_mul_f32 v{AC+i}, {hex(cb)}, v{AC+i}")
            cvt(14, AC, AC+1); cvt(15, AC+2, AC+3)
            a("s_branch L_h_kvst")
        else:
            a(f"""s_mul_i32 s15, s13, 640
s_add_u32 s15, s15, 1280
v_lshlrev_b32 v10, 4, v6
v_lshl_add_u32 v10, v9, 3, v10
v_add_u32 v10, s15, v10
v_lshl_add_u32 v11, v8, 8, v10
v_lshl_add_u32 v10, v8, 6, v10
v_add_u32 v10, 512, v10
s_cmp_eq_u32 {sP}, 0
s_cselect_b64 vcc, -1, 0
s_mov_b32 s62, 0x00ff00ff
s_cmp_eq_u32 s13, 0
s_cselect_b32 s62, s62, 0x000f000f
s_cmp_eq_u32 {sP}, 0
s_cselect_b32 s62, -1, s62
s_mov_b32 s63, s62
v_cndmask_b32 v10, v10, v11, vcc""")
            cvt(14, AC, AC+1); cvt(15, AC+2, AC+3)
            a(f"""s_cbranch_scc1 L_h_kvst
v_subrev_u32 v8, 4, v6
v_lshl_add_u32 v8, v8, 2, v5
v_lshlrev_b32 v9, 3, v8
v_add_u32 v9, 2560, v9
v_cmp_lt_u32 vcc, 3, v6
v_mov_b32 v11, 0x3f803f80
v_mov_b32 v12, 0x3f80
v_mov_b32 v13, 0
v_cndmask_b32 v10, v10, v9, vcc
v_cndmask_b32 v14, v14, v13, vcc
v_cndmask_b32 v15, v15, v13, vcc
v_cmp_eq_u32 vcc, 0, v8
v_lshrrev_b32 v8, 1, v8
v_cndmask_b32 v14, v14, v11, vcc
v_cndmask_b32 v15, v15, v12, vcc
v_cmp_eq_u32 vcc, 1, v8
s_nop 1
v_cndmask_b32 v14, v14, v11, vcc
v_cndmask_b32 v15, v15, v11, vcc""")
    a(f"L_h_kvst:\ns_mov_b64 exec, s[62:63]\nbuffer_store_dwordx2 v[14:15], v10, {rWS}, s12 offen sc1\ns_mov_b64 exec, -1")
    a(f"s_lshl_b32 s12, {sRB}, 3\ns_add_u32 s12, s12, {sHG}\ns_lshl_b32 s12, s12, 6\ns_add_u32 s12, s12, {FKV}")
    stamp("h", 2)
    a(f"s_waitcnt vmcnt(0)\ns_cmp_eq_u32 {sP}, 0\ns_cbranch_scc1 L_h_kvf")
    arrive(S_KVS)
    a("s_branch L_h_kvd\nL_h_kvf:")
    wait_ge(S_KVS, 1, 0)
    set_flag("s12", 16)
    a("L_h_kvd:")
    a("s_setprio 2")
    stamp("h", 3)
    a("L_h_b1:")
    C32, S32, N32, TW, F20, M3 = 8, 16, 24, 32, 56, 76
    AD, RE, IM, BO, TMP, WRAW = 80, 96, 112, 128, 140, 148
    vGB, vPL = "v7", "v164"
    sI0 = "s71"
    srd(44, pBX, 2048*1280)
    a(f"""s_lshl_b32 s12, {sP}, 8
s_add_u32 s12, s12, {sS0}
s_mul_i32 s12, s12, 1280
v_add_u32 v144, s12, v4
v_add_u32 v145, 1024, v144
v_add_u32 v146, {1024*1280-256}, v144
v_cmp_lt_u32 vcc, 15, {vL}
v_add_u32 v147, 1024, v146
s_mul_i32 s13, {sP}, 2560
s_add_u32 s13, s13, {BX}
v_cndmask_b32 v145, v145, v146, vcc
v_lshl_add_u32 {vGB}, v5, 6, v6
v_lshlrev_b32 {vPL}, 6, {vL}
s_mul_i32 {sI0}, {sP}, 3
s_cmp_eq_u32 {sP}, 3
s_cselect_b32 {sI0}, 8, {sI0}
s_mul_i32 s14, {sRB}, 10
s_mul_i32 s15, {sHG}, 321
s_add_u32 s14, s14, s15
s_and_b32 s70, s14, 1
s_add_u32 s70, s70, {sI0}
s_lshr_b32 s14, s14, 1
s_lshl_b32 s73, s14, 2""")
    wait_ge(S_FULL, 3, 4)
    stamp("h", 4)
    a(f"s_mov_b32 m0, s13\ns_nop 0\nbuffer_load_dwordx4 v144, {rA}, 0 offen lds\ns_add_u32 m0, m0, 1024\ns_nop 0\nbuffer_load_dwordx4 v145, {rA}, 0 offen lds")
    a(f"s_add_u32 m0, m0, 1024\ns_mov_b32 exec_hi, 0\nbuffer_load_dwordx4 v147, {rA}, 0 offen lds\ns_mov_b64 exec, -1")
    tload(C32, TB.OFF["C32_0"], 18)
    a(f"""v_bfe_u32 v144, {vL}, 2, 2
v_lshrrev_b32 v140, 5, {vL}
v_lshl_add_u32 v144, v140, 2, v144
v_mul_u32_u24 v144, 40, v144
v_and_b32 v146, 3, {vL}
v_lshlrev_b32 v146, 3, v146
v_bfe_u32 v147, {vL}, 4, 1
v_cmp_eq_u32 vcc, 1, v147
v_mov_b32 v147, 32
v_and_b32 v141, 31, {vL}
v_cndmask_b32 v146, v146, v147, vcc
v_add3_u32 v144, v144, v146, s13
v_mul_u32_u24 v145, 320, v140
v_add_u32 v145, v145, v141
s_lshl_b32 s12, {sP}, 2
s_add_u32 s12, s12, {ZS}
v_lshl_add_u32 v145, v145, 4, s12
s_lshl_b32 s12, {sP}, 5
v_add_u32 v146, s12, v141
v_mul_u32_u24 v147, {4*1408}, v140
v_lshl_add_u32 v147, v146, 2, v147
v_add_u32 v147, {RG}, v147
v_cmp_lt_u32 s[66:67], 31, {vL}
s_waitcnt vmcnt(18)""")
    for k in range(4):
        for jh in range(2): a(f"ds_read_b64_tr_b16 {vr(AD+4*k+2*jh,2)}, v144 offset:{1280*(k>>1) + 640*(k&1) + 320*jh}")
    a("s_waitcnt vmcnt(0) lgkmcnt(0)")
    stamp("h", 30)
    for k, (tr, ti) in enumerate(((C32, N32), (C32+4, N32+4), (S32, C32), (S32+4, C32+4))):
        mfma32(RE, AD+4*k, tr, RE if k else None); mfma32(IM, AD+4*k, ti, IM if k else None)
    for r in range(12): cmul(RE+r, IM+r, RE+r, IM+r, TW+r, TW+12+r, False, TMP+2*(r & 1))
    for i in range(4): cvt(BO+i, RE+2*i, RE+2*i+1)
    for i in range(4): cvt(BO+4+i, IM+2*i, IM+2*i+1)
    for i in range(2): cvt(BO+8+i, RE+8+2*i, RE+9+2*i)
    for i in range(2): cvt(BO+10+i, IM+8+2*i, IM+9+2*i)
    for k, (tr, ti) in enumerate(((F20, F20+8), (F20+4, F20), (F20+12, F20+16))):
        mfma32(RE, tr, BO+4*k, RE if k else None); mfma32(IM, ti, BO+4*k, IM if k else None)
    for r in range(10):
        cvt(AD+r, RE+r, IM+r); a(f"ds_write_b32 v145, v{AD+r} offset:{512*r}")
    stamp("h", 31)
    hbar()
    stamp("h", 32)
    a("v_mov_b32 v142, 0")
    for q in range(3):
        a(f"v_add_u32 v140, {128*q}, v146\nv_sub_u32 v141, 640, v140\nv_cmp_eq_u32 vcc, 0, v140\nv_cndmask_b32 v141, v141, v142, vcc\nv_cndmask_b32 v140, v140, v141, s[66:67]\nv_lshlrev_b32 v140, 4, v140")
        a(f"ds_read_b128 {vr(BO+4*q,4)}, v140 offset:{ZS}")
    a("s_waitcnt lgkmcnt(0)")
    DD = [RE, IM, AD]
    for q in range(3): mfma32(DD[q], M3, BO+4*q, None)
    a(f"s_mul_i32 s13, {sS0}, {TP}\ns_add_u32 s13, s13, {TBUF}\ns_mul_i32 s14, {sP}, 3072\ns_add_u32 s13, s13, s14\ns_add_u32 s14, s14, {RG}\nv_add_u32 v140, s14, v4")
    for q in range(3):
        if q == 2: a(f"s_cmp_eq_u32 {sP}, 3\ns_cbranch_scc1 L_b1_sk")
        for t in range(4):
            cvt(BO+4*q+t, DD[q]+2*t, DD[q]+2*t+1)
            a(f"ds_write_b32 v147, v{BO+4*q+t} offset:{512*q+1408*t}")
    a("L_b1_sk:")
    hbar()
    for q in range(3): a(f"ds_read_b128 {vr(BO+4*q,4)}, v140 offset:{1024*q}")
    for q in range(3):
        if q == 2: a(f"s_cmp_eq_u32 {sP}, 3\ns_cbranch_scc1 L_b1_s2")
        a(f"s_waitcnt lgkmcnt({2-q})\nbuffer_store_dwordx4 {vr(BO+4*q,4)}, v4, {rWS}, s13 offen offset:{1024*q} sc1")
    a("L_b1_s2:")
    stamp("h", 33)
    G_, TF, TI, H_, F16, TM = 8, 16, 24, 32, 40, 48
    WF, OUTR, AT, R2 = 64, 88, 104, 116
    srd(44, pWR, 2048*642); srd(48, pWI, 2048*642)
    a(f"v_lshrrev_b32 v140, 1, {vL}\nv_mul_u32_u24 v140, {8*642}, v140\nv_and_b32 v141, 1, {vL}\nv_lshl_add_u32 v140, v141, 4, v140")
    a(f"s_mul_i32 s14, {sP}, {64*8*642}\ns_add_u32 s73, s73, s14\ns_add_u32 s74, s73, {32*8*642}\ns_lshl_b32 s14, {sP}, 11\ns_add_u32 s14, s14, {RG}")
    a("s_waitcnt vmcnt(0) lgkmcnt(0)")
    stamp("h", 5)
    hbar()
    a(f"s_cmp_lg_u32 {sP}, 0\ns_cbranch_scc1 L_b2_nf\ns_lshl_b32 s58, s2, 6\ns_add_u32 s58, s58, {FB1}")
    set_flag("s58", 60)
    a(f"L_b2_nf:")
    for z, rr in enumerate((rA, rB)):
        a(f"s_add_u32 m0, s14, {8192*z}\nbuffer_load_dwordx4 v140, {rr}, s73 offen lds\ns_add_u32 m0, m0, 1024\nbuffer_load_dwordx4 v140, {rr}, s74 offen lds")
    a(f"s_lshl_b32 s59, {sHG}, 13\ns_add_u32 s59, s59, {TB.OFF['B2_0']}")
    for q in range(8):
        if q == 4: a("s_add_u32 s59, s59, 4096")
        a(f"buffer_load_dwordx4 {vr(G_+4*q,4)}, v4, {rC}, s59 offen offset:{1024*(q%4)}")
    tload(F16, TB.OFF["F16"], 2)
    for i in range(24): a(f"v_mov_b32 v{WF+i}, 0")
    a(f"s_mul_i32 s14, {sHG}, 1408\ns_mul_i32 s15, {sRB}, 40\ns_add_u32 s14, s14, s15\ns_add_u32 s14, s14, {TBUF}\ns_mul_i32 s15, {sP}, {64*TP}\ns_add_u32 s14, s14, s15\ns_mov_b32 s15, {TP}")
    for y in range(3):
        a(f"v_add_u32 v141, {64*y}, {vL}\nv_mul_u32_u24 v142, 43691, v141\nv_lshrrev_b32 v142, 17, v142\nv_mul_u32_u24 v143, 3, v142\nv_sub_u32 v143, v141, v143\nv_mul_lo_u32 v142, v142, s15\nv_lshl_add_u32 v{144+y}, v143, 4, v142")
    a(f"v_lshlrev_b32 v140, 5, {vGB}\ns_lshl_b32 s15, s70, 1\ns_add_u32 s15, s15, {RG}\nv_add_u32 v140, s15, v140\nv_mul_u32_u24 v147, 48, {vGB}\ns_lshl_b32 s15, {sI0}, 2\ns_add_u32 s15, s15, {RG}\nv_add_u32 v147, s15, v147")
    a("s_waitcnt vmcnt(10)")
    stamp("h", 34)
    hbar()
    for t in range(3):
        for z in range(2):
            for r in range(4): a(f"ds_read_u16_d16_hi v{WF+8*t+4*z+r}, v140 offset:{8192*z+512*r+2*t}")
    a(f"s_cmp_lg_u32 {sP}, 0\ns_cbranch_scc1 L_b2_np")
    for k in range(4): a(f"s_mov_b32 s{72+k}, {FB1+4096*k}")
    poll(vPL, ["s72", "s73", "s74", "s75"], 52, 16)
    stamp("h", 41)
    acquire()
    a("L_b2_np:")
    hbar(8)
    stamp("h", 6)
    a(f"s_mul_i32 s15, {sP}, 3072\ns_add_u32 m0, s15, {RG}")
    for y in range(3):
        a(f"buffer_load_dwordx4 v{144+y}, {rWS}, s14 offen{SC} lds")
        if y < 2: a("s_add_u32 m0, m0, 1024")
    stamp("h", 35)
    a("s_waitcnt vmcnt(0)")
    hbar()
    for t in range(3):
        for r in range(4): a(f"ds_read_b32 v{AT+4*t+r}, v147 offset:{768*r+4*t}")
    a("s_waitcnt lgkmcnt(0)")
    arrive(S_HB)
    stamp("h", 36)
    def tw_stage(tc, ts, conj, first_im):
        for t in range(3):
            re, im = R2+8*t, R2+8*t+4
            for r in range(4):
                c_, s_ = (tc(t)+r, ts(t)+r)
                cmul(re+r, im+r, re+r, im+r, c_, s_, conj, TM+2*(r & 1))
            x, y = (im, re) if first_im else (re, im)
            cvt(AT+4*t, x, x+1); cvt(AT+4*t+1, x+2, x+3); cvt(AT+4*t+2, y, y+1); cvt(AT+4*t+3, y+2, y+3)
    for t in range(3): mfma16(R2+8*t, AT+4*t, G_, None); mfma16(R2+8*t+4, AT+4*t, G_+4, None)
    tw_stage(lambda t: TF, lambda t: TF+4, False, False)
    for t in range(3): mfma16(R2+8*t, F16, AT+4*t, None); mfma16(R2+8*t+4, F16+4, AT+4*t, None)
    tw_stage(lambda t: WF+8*t, lambda t: WF+8*t+4, True, True)
    for t in range(3): mfma16(R2+8*t, AT+4*t, F16+4, None); mfma16(R2+8*t+4, AT+4*t, F16, None)
    tw_stage(lambda t: TI, lambda t: TI+4, True, False)
    for t in range(3): mfma16(R2+8*t, H_, AT+4*t, None); mfma16(R2+8*t+4, H_+4, AT+4*t, None)
    a(f"s_lshl_b32 s14, {sHG}, 5\ns_add_u32 s14, s14, {sRB}\ns_mul_i32 s14, s14, {UP}\ns_mul_i32 s15, {sP}, 3072\ns_add_u32 s14, s14, s15\ns_add_u32 s14, s14, {UBUF}\ns_add_u32 s15, s15, {RG}\nv_add_u32 v140, s15, v4")
    hb_count[0] += 4; wait_ge(S_HB, hb_count[0], 1)
    for t in range(3):
        for r in range(4):
            cvt(OUTR+4*t+r, R2+8*t+r, R2+8*t+4+r)
            a(f"ds_write_b32 v147, v{OUTR+4*t+r} offset:{768*r+4*t}")
    hbar()
    for q in range(3): a(f"ds_read_b128 {vr(OUTR+4*q,4)}, v140 offset:{1024*q}")
    for q in range(3): a(f"s_waitcnt lgkmcnt({2-q})\nbuffer_store_dwordx4 {vr(OUTR+4*q,4)}, v4, {rWS}, s14 offen offset:{1024*q} sc1")
    global HB_RG_FREE
    HB_RG_FREE = hb_count[0] + 4
    stamp("h", 37)
    M3I, I20, TW3 = 32, 36, 56
    BO, DD, AD, RE, IM, AX = 88, [100, 116, 132], 88, 100, 116, 132
    vN, vH = "v148", "v149"
    tload(C32, TB.OFF["C32_0"], 6); tload(M3I, TB.OFF["M3I"], 14)
    a(f"""v_and_b32 {vN}, 31, {vL}
v_lshrrev_b32 {vH}, 5, {vL}
s_lshl_b32 s12, {sP}, 5
v_add_u32 v150, s12, {vN}
s_mul_i32 s13, {sS0}, 48
s_add_u32 s13, s13, {UBUF}
s_add_u32 s14, s13, {32*UP}
s_add_u32 s15, s13, {64*UP}
s_add_u32 s57, s13, {96*UP}
v_mul_u32_u24 v151, {128*UP}, {vH}
v_mov_b32 v165, 640""")
    for q in range(3):
        a(f"""v_add_u32 v152, {128*q}, v150
v_min_u32 v153, 320, v152
v_mul_u32_u24 v154, 52429, v153
v_lshrrev_b32 v154, 19, v154
v_min_u32 v154, 31, v154
v_mul_u32_u24 v154, {UP-40}, v154
v_lshl_add_u32 v153, v153, 2, v151
v_add_u32 v{156+q}, v153, v154
v_sub_u32 v155, 640, v152
v_cmp_lt_u32 vcc, 320, v152
v_cndmask_b32 v152, v152, v155, s[66:67]
v_cndmask_b32 v152, v152, v165, vcc
v_lshlrev_b32 v{160+q}, 4, v152""")
    a("s_waitcnt vmcnt(20)")
    stamp("h", 7)
    hbar()
    a(f"s_cmp_lg_u32 {sP}, 0\ns_cbranch_scc1 L_b3_np\ns_lshl_b32 s58, s2, 6\ns_add_u32 s58, s58, {FB2}")
    set_flag("s58", 100)
    for k in range(4): a(f"s_mov_b32 s{72+k}, {FB2+4096*k}")
    poll(vPL, ["s72", "s73", "s74", "s75"], 104, 16)
    stamp("h", 42)
    acquire()
    a("L_b3_np:")
    hbar(8)
    stamp("h", 8)
    for q in range(3):
        for t in range(4): a(f"buffer_load_dword v{BO+4*q+t}, v{156+q}, {rWS}, {['s13','s14','s15','s57'][t]} offen{SC}")
    stamp("h", 38)
    a("s_waitcnt vmcnt(0)")
    stamp("h", 39)
    for q in range(3): mfma32(DD[q], M3I, BO+4*q, None)
    a(f"v_cmp_eq_u32 s[62:63], 0, {vN}\ns_cmp_eq_u32 {sP}, 0\ns_cbranch_scc1 L_b3_f0\ns_cmp_eq_u32 {sP}, 2\ns_cbranch_scc1 L_b3_f2\ns_branch L_b3_fd")
    for lab, q in (("L_b3_f0", 0), ("L_b3_f2", 2)):
        a(f"{lab}:\ns_nop 11")
        for r in range(8):
            d = DD[q]+r
            a(f"v_mov_b32 v152, v{d}\nv_mov_b32 v153, v{d}\nv_permlane32_swap_b32 v152, v153\nv_add_f32 v152, v152, v153\nv_mul_f32 v152, 0.5, v152\nv_cndmask_b32 v{d}, v{d}, v152, s[62:63]")
        if q == 0: a("s_branch L_b3_fd")
    a("L_b3_fd:\ns_nop 8")
    for q in range(3):
        for t in range(4): cvt(BO+4*q+t, DD[q]+2*t, DD[q]+2*t+1)
        a(f"ds_write_b128 v{160+q}, {vr(BO+4*q,4)} offset:{ZS}")
    a(f"v_mul_u32_u24 v151, 320, {vH}\nv_add_u32 v151, v151, {vN}\ns_lshl_b32 s12, {sP}, 2\ns_add_u32 s12, s12, {ZS}\nv_lshl_add_u32 v151, v151, 4, s12")
    srd(44, pOUT, 2048*2560)
    a(f"s_lshl_b32 s12, {sP}, 8\ns_add_u32 s12, s12, {sS0}\ns_mul_i32 s12, s12, 2560\ns_add_u32 s12, s12, 1280\ns_add_u32 s13, s12, {1024*2560}\nv_mul_u32_u24 v150, 40, {vN}\nv_lshl_add_u32 v150, {vH}, 3, v150")
    hbar()
    stamp("h", 40)
    for r in range(10): a(f"ds_read_b32 v{AD+r}, v151 offset:{512*r}")
    a("s_waitcnt lgkmcnt(0)")
    mfma32(RE, AD, I20, None); mfma32(IM, AD, I20+8, None)
    mfma32(RE, AD+4, I20+4, RE); mfma32(IM, AD+4, I20+12, IM)
    mfma32h(RE, AD+8, I20+16, RE); mfma32h(IM, AD+8, I20+18, IM)
    for r in range(16): cmul(RE+r, IM+r, RE+r, IM+r, TW3+r, TW3+16+r, True, 152+2*(r & 1))
    for i in range(8): cvt(AX+i, RE+2*i, RE+2*i+1)
    for i in range(8): cvt(AX+8+i, IM+2*i, IM+2*i+1)
    for k, (tr, ti) in enumerate(((C32, S32), (C32+4, S32+4), (N32, C32), (N32+4, C32+4))):
        mfma32(RE, AX+4*k, tr, RE if k else None); mfma32(IM, AX+4*k, ti, IM if k else None)
    for z, (D, so) in enumerate(((RE, "s12"), (IM, "s13"))):
        for G in range(3):
            o = 88 + 6*z + 2*G
            cvt(o, D+4*G, D+4*G+1); cvt(o+1, D+4*G+2, D+4*G+3)
            if G == 2: a("s_mov_b32 exec_hi, 0")
            a(f"buffer_store_dwordx2 {vr(o,2)}, v150, {rA}, {so} offen offset:{16*G}")
            if G == 2: a("s_mov_b64 exec, -1")
    stamp("h", 10)
    a("s_waitcnt lgkmcnt(0)\ns_barrier")
    a(f"ds_read_b32 {vT}, {vSY} offset:{S_BAD}\ns_waitcnt lgkmcnt(0)\nv_readfirstlane_b32 s60, {vT}\ns_cmp_eq_u32 s60, 0\ns_cbranch_scc1 L_tail\ns_barrier\ns_branch L_tail")

prologue()
att_head()
att_main()
tail()
helper()
loader()
a("L_exit:\ns_endpgm")
body = a.finish()
hdr = f"""; MQA attention (heads 32 x 20) + output projection, and a 2-D real-FFT filter, in one launch.
; @launch grid=(256,1,1) block=(576,1,1) lds={LDS_BYTES}
.amdgcn_target "amdgcn-amd-amdhsa--gfx950"
.text
.globl {NAME}_kernel
.p2align 8
.type {NAME}_kernel,@function
{NAME}_kernel:
"""
tab = ".p2align 8\n.type L_tables,@object\nL_tables:\n"
B = TB.BLOB
for i in range(0, len(B), 8): tab += ".long " + ",".join(f"0x{x:x}" for x in B[i:i+8]) + "\n"
tab += f".size L_tables, {B.nbytes}\n"
ftr = f""".section .rodata,"a"
.p2align 6
.amdhsa_kernel {NAME}_kernel
  .amdhsa_next_free_vgpr 168
  .amdhsa_next_free_sgpr 96
  .amdhsa_accum_offset 168
  .amdhsa_group_segment_fixed_size 0
  .amdhsa_kernarg_size 88
  .amdhsa_user_sgpr_count 2
  .amdhsa_user_sgpr_kernarg_segment_ptr 1
  .amdhsa_system_sgpr_workgroup_id_x 1
.end_amdhsa_kernel
"""
open(OUT, "w").write(hdr + body + tab + ftr)
print("wrote", OUT, len(hdr + body + tab + ftr), "bytes;", len(a.l), "lines")
```

```python
import sys, math
from asmlib import Asm
import tables as TB

NAME = "concat_heads__grouped_kv_mqa__spectral_gfnet__prompt"
PROF = "--prof" in sys.argv
SC = "" if ("--inv" in sys.argv or "--plain" in sys.argv) else " sc1"
OUT = [a for a in sys.argv[1:] if not a.startswith("--")]
OUT = OUT[0] if OUT else f"cdna_kernels/{NAME}.s"

X0, WA, WB, WKV = 0, 81920, 106496, 137728
SLOT_A, SLOT_B = 141824, 0
ZS, WO, BX, SY = 21504, 32768, 124928, 163328
LDS_BYTES = 163840
S_KVL, S_KVD, S_FULL, S_HB, S_BAD, S_ISS, S_LQ, S_KVS, S_QB, S_FREE = 0, 4, 12, 20, 24, 28, 32, 52, 64, 80
SLOTS = [SLOT_A, SLOT_B] + [WO + 21504*k for k in range(4)] + [SLOT_A, SLOT_B]
TILE = 2688
RG = 118784
TP, UP = 11392, 12416
XN, FKV, FB1, FB2, FO = 0, 0x1000, 0x10000, 0x14000, 0x18000
KVI, OBUF, TBUF, UBUF, WSZ = 0x20000, 0x80000, 0x300000, 0x600000, 0xA00000
PROFOFF = 0xA00000
if PROF: WSZ = 0xB00000
sW, sXCD, sI, sRB, sHG, sU0, sKVQ = "s3", "s4", "s5", "s6", "s7", "s8", "s9"
pAX, pWQ, pWK, pWV, pWO, pBX, pWR, pWI, pOUT, pDBG, pWS = 16, 18, 20, 22, 24, 26, 28, 30, 32, 34, 36
NON = "s[38:39]"
rWS, rA, rB, rC = "s[40:43]", "s[44:47]", "s[48:51]", "s[52:55]"
vL, vSY, vONE, vT = "v0", "v1", "v2", "v3"
a = Asm()
def vr(b, n): return f"v[{b}:{b+n-1}]" if n > 1 else f"v{b}"
def srd(base, ptr, size):
    a(f"s_mov_b32 s{base}, s{ptr}\ns_mov_b32 s{base+1}, s{ptr+1}\ns_mov_b32 s{base+2}, {hex(size)}\ns_mov_b32 s{base+3}, 0x20000")
def arrive(off, va=vSY):
    a(f"s_mov_b64 exec, 1\nds_add_u32 {va}, {vONE} offset:{off}\ns_mov_b64 exec, -1")
def wait_min4(off, tgt, sleep, vq):
    l = a.lab("w"); d = a.lab("wd")
    a(f"{l}:\nds_read_b128 {vr(vq,4)}, {vSY} offset:{off}\ns_waitcnt lgkmcnt(0)\nv_min3_u32 v{vq}, v{vq}, v{vq+1}, v{vq+2}\nv_min_u32 v{vq}, v{vq}, v{vq+3}\nv_readfirstlane_b32 s60, v{vq}\ns_cmp_ge_u32 s60, {tgt}\ns_cbranch_scc1 {d}\n{spin(d)}s_sleep {sleep}\ns_branch {l}\n{d}:")
def spin(d):
    return f"s_cmp_eq_u32 s76, 0\ns_cbranch_scc1 {d}\ns_sub_u32 s76, s76, 1\n"
def wait_ge(off, tgt, sleep=1, va=vSY):
    l = a.lab("w"); d = a.lab("wd")
    a(f"{l}:\nds_read_b32 {vT}, {va} offset:{off}\ns_waitcnt lgkmcnt(0)\nv_readfirstlane_b32 s60, {vT}\ns_cmp_ge_u32 s60, {tgt}\ns_cbranch_scc1 {d}\n{spin(d)}s_sleep {sleep}\ns_branch {l}\n{d}:")
def nonce_load():
    a(f"s_load_dwordx2 s[38:39], s[{pWS}:{pWS+1}], {XN}")
def nonce():
    a("s_waitcnt lgkmcnt(0)")
    a("s_mul_i32 s38, s38, 0x9E3779B1\ns_add_u32 s38, s38, 0x7F4A7C15\ns_mul_i32 s39, s39, 0x2C9277B5\ns_add_u32 s39, s39, 0x5851F42D")
def set_flag(soff, v0_):
    a(f"v_mov_b32 v{v0_}, s38\nv_mov_b32 v{v0_+1}, s39\nv_mov_b32 v{v0_+2}, 0\ns_mov_b64 exec, 1")
    a(f"buffer_store_dwordx2 {vr(v0_,2)}, v{v0_+2}, {rWS}, {soff} offen sc1\ns_mov_b64 exec, -1")
def poll(vaddr, soffs, vd, sleep):
    l = a.lab("p"); d = a.lab("pd")
    a(f"{l}:")
    for k, so in enumerate(soffs): a(f"buffer_load_dwordx2 {vr(vd+2*k,2)}, {vaddr}, {rWS}, {so} offen sc1")
    a("s_waitcnt vmcnt(0)")
    a(f"v_cmp_ne_u64 vcc, {NON}, {vr(vd,2)}")
    for k in range(1, len(soffs)):
        a(f"v_cmp_ne_u64 s[62:63], {NON}, {vr(vd+2*k,2)}\ns_or_b64 vcc, vcc, s[62:63]")
    a(f"s_cbranch_vccz {d}\n{spin(d)}s_sleep {sleep}\ns_branch {l}\n{d}:")
def acquire():
    if "--inv" in sys.argv: a("buffer_inv sc1\ns_waitcnt vmcnt(0)")
prof_n = {}
def stamp(role, idx):
    if not PROF: return
    a(f"s_memrealtime s[64:65]\ns_waitcnt lgkmcnt(0)\nv_writelane_b32 v167, s64, {idx}")
def prof_flush():
    if not PROF: return
    if "--dbgout" in sys.argv:
        l = a.lab("nd")
        a(f"s_or_b32 s64, s2, {sW}\ns_cmp_lg_u32 s64, 0\ns_cbranch_scc1 {l}")
        srd(48, pDBG, 256)
        a("v_readlane_b32 s64, v167, 0\nv_readlane_b32 s65, v167, 20\nv_writelane_b32 v167, s65, 6\nv_readlane_b32 s65, v167, 21\nv_writelane_b32 v167, s65, 7\nv_readlane_b32 s65, v167, 22\nv_writelane_b32 v167, s65, 8\nv_readlane_b32 s65, v167, 23\nv_writelane_b32 v167, s65, 9")
        a(f"v_subrev_u32 v167, s64, v167\nv_lshlrev_b32 v166, 2, {vL}\nbuffer_store_dword v167, v166, {rB}, 0 offen\ns_waitcnt vmcnt(0)\n{l}:")
        return
    a("v_writelane_b32 v167, s76, 63")
    a(f"s_mul_i32 s64, s2, 9\ns_add_u32 s64, s64, {sW}\ns_lshl_b32 s64, s64, 8\ns_add_u32 s64, s64, {PROFOFF}\nv_lshlrev_b32 v166, 2, {vL}")
    a(f"buffer_store_dword v167, v166, {rWS}, s64 offen\ns_waitcnt vmcnt(0)")
def mfma32(d, A, B, C): a(f"v_mfma_f32_32x32x16_bf16 {vr(d,16)}, {vr(A,4)}, {vr(B,4)}, {vr(C,16) if C is not None else 0}")
def mfma32h(d, A, B, C): a(f"v_mfma_f32_32x32x8_bf16 {vr(d,16)}, {vr(A,2)}, {vr(B,2)}, {vr(C,16) if C is not None else 0}")
def mfma16(d, A, B, C): a(f"v_mfma_f32_16x16x32_bf16 {vr(d,4)}, {vr(A,4)}, {vr(B,4)}, {vr(C,4) if C is not None else 0}")
def cvt(d, x, y): a(f"v_cvt_pk_bf16_f32 v{d}, v{x}, v{y}")
def next_u(s):
    a(f"s_add_u32 {s}, {s}, 1\ns_cmp_eq_u32 {s}, 5\ns_cselect_b32 {s}, 0, {s}")

def prologue():
    if "--first" in sys.argv: a("s_memrealtime s[78:79]")
    a(f"""s_cmp_ge_u32 s2, 256
s_cbranch_scc1 L_exit
s_load_dwordx16 s[16:31], s[0:1], 0
s_load_dwordx4 s[32:35], s[0:1], 64
s_load_dwordx2 s[36:37], s[0:1], 80
v_lshrrev_b32 v1, 6, v0
v_and_b32 v0, 63, v0
v_readfirstlane_b32 {sW}, v1
s_and_b32 {sXCD}, s2, 7
s_lshr_b32 {sI}, s2, 3
s_lshr_b32 {sRB}, {sI}, 3
s_lshl2_add_u32 {sRB}, {sXCD}, {sRB}
s_and_b32 {sHG}, {sI}, 7
s_lshr_b32 {sKVQ}, {sHG}, 1
s_and_b32 {sU0}, {sRB}, 3
s_add_u32 {sU0}, {sU0}, {sHG}
s_cmp_ge_u32 {sU0}, 5
s_cselect_b32 s10, 5, 0
s_sub_u32 {sU0}, {sU0}, s10
s_cmp_ge_u32 {sU0}, 5
s_cselect_b32 s10, 5, 0
s_sub_u32 {sU0}, {sU0}, s10
v_mov_b32 {vSY}, {SY}
v_mov_b32 {vONE}, 1
s_mov_b32 s76, 0x40000""")
    if PROF: a("v_mov_b32 v167, 0")
    stamp("all", 0)
    a(f"s_cmp_ge_u32 {sW}, 8\ns_cbranch_scc1 L_loader\ns_barrier\ns_cmp_ge_u32 {sW}, 4\ns_cbranch_scc1 L_helper")

QA1, QA2, QB1, QB2 = 4, 8, 10, 14
OA, OB_, SA, SB, PA, PB = 16, 32, 48, 64, 80, 96
KB1 = [112, 116]; KB2 = [120, 122]; VB = [124, 132]
aK1, aK2, aV0, aV1, vIDX, vSW = 140, 141, 142, 143, 144, "v145"
def att_head():
    XG, WG_, XA, WAa = 148, 151, 154, 162
    AC0, AC1 = 16, 32
    FB = [48, 60, 72]
    sQH, sHP = "s10", "s11"
    a(f"s_and_b32 {sQH}, {sW}, 1\ns_lshr_b32 {sHP}, {sW}, 1\ns_lshl_b32 s12, {sW}, 2\nv_add_u32 {vSW}, s12, {vSY}")
    a("s_waitcnt lgkmcnt(0)")
    srd(40, pWS, WSZ)
    a(f"v_and_b32 v4, 31, {vL}\nv_lshrrev_b32 v5, 5, {vL}\nv_and_b32 v6, 15, {vL}\ns_lshl_b32 s14, {sQH}, 13\nv_lshlrev_b32 v4, 8, v4\nv_add_u32 v4, s14, v4")
    for k in range(8):
        a(f"v_or_b32 v7, {2*k}, v5\nv_xor_b32 v7, v7, v6\nv_lshl_add_u32 v{XA+k}, v7, 4, v4")
    a(f"""v_bfe_u32 v4, {vL}, 4, 1
v_cmp_eq_u32 vcc, 0, v4
v_mov_b32 v7, 0x38282020
v_mov_b32 v8, 0x18081000
v_and_b32 v9, 3, {vL}
v_lshlrev_b32 v9, 3, v9
v_cndmask_b32 v7, v7, v8, vcc
v_bfe_u32 v7, v7, v9, 8
v_mov_b32 v8, 0x48484030
v_bfe_u32 v8, v8, v9, 8
v_bfe_u32 v9, {vL}, 2, 2
v_lshl_add_u32 v9, v5, 3, v9
v_mul_u32_u24 v9, 192, v9
s_and_b32 s14, {sHG}, 1
s_lshl_b32 s14, s14, 5
s_mul_i32 s15, {sHP}, 80
s_add_u32 s14, s14, s15
s_add_u32 s14, s14, {WA}
v_add3_u32 v{WAa}, v9, v7, s14
v_add3_u32 v{WAa+1}, v9, v8, s14""")
    for i in range(32): a(f"v_mov_b32 v{AC0+i}, 0")
    sN = "s12"
    wait_ge(S_KVL, 2)
    stamp("att", 1)
    a(f"s_mov_b32 {sN}, 0\nv_mov_b32 v148, {SY}\nL_qloop:")
    wait_ge(S_LQ, 1, 0, "v148")
    a("v_add_u32 v148, 4, v148")
    def rd(k):
        f = FB[k % 3]
        a(f"ds_read_b128 {vr(f,4)}, v{XA+k}")
        for t in range(2):
            for jh in range(2):
                a(f"ds_read_b64_tr_b16 {vr(f+4+4*t+2*jh,2)}, v{WAa+t} offset:{(16*k+4*jh)*192}")
    rd(0); rd(1)
    for k in range(8):
        if k < 6: rd(k+2); a("s_waitcnt lgkmcnt(10)")
        else: a(f"s_waitcnt lgkmcnt({5 if k == 6 else 1})")
        f = FB[k % 3]
        if k == 6: arrive(S_QB, vSW)
        mfma32(AC0, f+4, f, AC0); mfma32(AC1, f+8, f, AC1)
    for k in range(8): a(f"v_add_u32 v{XA+k}, 16384, v{XA+k}")
    a(f"s_mov_b32 s14, {WB-WA}\ns_cmp_eq_u32 {sN}, 1\ns_cselect_b32 s14, {WKV-WB}, s14\ns_cmp_eq_u32 {sN}, 2\ns_cselect_b32 s14, {(WA-WKV) & 0xffffffff}, s14")
    a(f"v_add_u32 v{WAa}, s14, v{WAa}\nv_add_u32 v{WAa+1}, s14, v{WAa+1}")
    a(f"s_add_u32 {sN}, {sN}, 1\ns_cmp_lt_u32 {sN}, 5\ns_cbranch_scc1 L_qloop")
    stamp("att", 2)
    a(f"""v_lshlrev_b32 v{aK1}, 4, {vL}
v_add_u32 v{aK1}, {SLOT_A}, v{aK1}
v_and_b32 v150, 31, {vL}
v_lshrrev_b32 v151, 5, {vL}
v_lshlrev_b32 v152, 3, v150
v_add_u32 v152, {SLOT_A+1024}, v152
v_mov_b32 v153, {SLOT_A+2560}
v_cmp_lt_u32 s[66:67], 31, {vL}
v_lshlrev_b32 v154, 4, v150
v_lshl_add_u32 v155, v151, 8, v154
v_cndmask_b32 v{aK2}, v152, v153, s[66:67]
v_lshl_add_u32 v156, v151, 6, v154
v_add_u32 v156, 256, v156
v_cmp_lt_u32 vcc, 15, v150
v_and_b32 v157, 27, v150
v_cndmask_b32 v155, v155, v156, vcc
v_add_u32 v155, {SLOT_A+1280}, v155
v_add_u32 v156, 640, v155
v_cmp_eq_u32 vcc, 24, v157
v_mov_b32 v158, {SLOT_A+2560+32}
v_mov_b32 v159, {SLOT_A+2560+16}
v_cndmask_b32 v158, v158, v159, vcc
v_cmp_lt_u32 vcc, 19, v150
v_mov_b32 v{vIDX}, 0xdddd
v_mov_b32 v157, 0
v_cndmask_b32 v{aV0}, v155, v158, vcc
v_cndmask_b32 v{aV1}, v156, v158, vcc""")
    for i in range(4): cvt(QA1+i, AC0+2*i, AC0+2*i+1)
    for i in range(2): cvt(QA2+i, AC0+8+2*i, AC0+9+2*i)
    for i in range(2): cvt(QB1+i, AC0+12+2*i, AC0+13+2*i)
    for i in range(2): cvt(QB1+2+i, AC1+2*i, AC1+1+2*i)
    for i in range(2): cvt(QB2+i, AC1+4+2*i, AC1+5+2*i)
    for r in (QA2, QA2+1, QB2, QB2+1): a(f"v_cndmask_b32 v{r}, v{r}, v157, s[66:67]")

sPB, sEP, sTG, sDK, sDV, sPASS = "s12", "s13", "s14", "s15", "s56", "s57"
def smf(O, V, P): a(f"v_smfmac_f32_32x32x32_bf16 {vr(O,16)}, {vr(V,4)}, {vr(P,8)}, v{vIDX}")
def exps(P, S, i0):
    for i in range(i0, i0+4): a(f"v_exp_f32 v{P+i}, v{S+i}")
DELTA = [(SLOTS[(e+1) % 8] - SLOTS[e]) & 0xffffffff for e in range(8)]
def att_main():
    for e in range(9): a(f"s_mov_b32 s{80+e}, {DELTA[e % 8]}")
    a(f"s_mov_b32 {sPB}, 0\ns_mov_b32 {sPASS}, 0\nL_pass:")
    a(f"s_add_u32 s61, {sPB}, 1")
    for i in range(32): a(f"v_mov_b32 v{OA+i}, 0")
    for i in range(8): a(f"v_mov_b32 v{PB+8+i}, 0")
    for i in range(4): a(f"v_mov_b32 v{VB[1]+4+i}, 0")
    wait_ge(S_FULL, "s61", 0)
    stamp("att", 3)
    for j in range(2):
        a(f"ds_read_b128 {vr(KB1[j],4)}, v{aK1} offset:{j*TILE}\nds_read_b64 {vr(KB2[j],2)}, v{aK2} offset:{j*TILE}")
    a(f"ds_read_b128 {vr(VB[0],4)}, v{aV0}\nds_read_b128 {vr(VB[0]+4,4)}, v{aV1}")
    a(f"s_mov_b32 {sEP}, 0\ns_mov_b32 {sDK}, {DELTA[0]}\ns_waitcnt lgkmcnt(4)")
    mfma32(SA, KB1[0], QA1, None); mfma32h(SA, KB2[0], QA2, SA)
    a(f"s_add_u32 {sTG}, {sPB}, 2\ns_nop 7\ns_nop 1\n.p2align 3\nL_epoch:")
    for j in range(8):
        kb, vb = j & 1, j & 1
        jk = (j+2) % 8; jv = (j+1) % 8
        mfma32(SB, KB1[kb], QB1, None); exps(PA, SA, 0)
        mfma32h(SB, KB2[kb], QB2, SB); exps(PA, SA, 4)
        smf(OB_, VB[1-vb]+4, PB+8); exps(PA, SA, 8)
        a("s_waitcnt lgkmcnt(0)")
        if j == 6:
            a(f"v_readfirstlane_b32 s60, {vT}\nv_add_u32 v{aK1}, {sDK}, v{aK1}\nv_add_u32 v{aK2}, {sDK}, v{aK2}\ns_cmp_lt_u32 s60, {sTG}\ns_cbranch_scc1 L_notfull\nL_full:")
        smf(OA, VB[vb], PA); a(f"ds_read_b128 {vr(KB1[kb],4)}, v{aK1} offset:{jk*TILE}"); exps(PA, SA, 12)
        mfma32(SA, KB1[1-kb], QA1, None); a(f"ds_read_b64 {vr(KB2[kb],2)}, v{aK2} offset:{jk*TILE}"); exps(PB, SB, 0)
        if j == 7: a(f"v_add_u32 v{aV0}, {sDK}, v{aV0}\nv_add_u32 v{aV1}, {sDK}, v{aV1}")
        mfma32h(SA, KB2[1-kb], QA2, SA); a(f"ds_read_b128 {vr(VB[1-vb],4)}, v{aV0} offset:{jv*TILE}"); exps(PB, SB, 4)
        smf(OA, VB[vb]+4, PA+8); a(f"ds_read_b128 {vr(VB[1-vb]+4,4)}, v{aV1} offset:{jv*TILE}")
        if j == 6: arrive(S_FREE, vSW)
        if j == 5: a(f"ds_read_b32 {vT}, {vSY} offset:{S_FULL}")
        exps(PB, SB, 8)
        if j == 7:
            a(f"s_add_u32 {sEP}, {sEP}, 1\ns_mov_b32 m0, {sEP}\ns_cmp_lt_u32 {sEP}, 7\ns_addc_u32 {sTG}, {sTG}, 0\ns_movrels_b32 {sDK}, s80\ns_cmp_lt_u32 {sEP}, 8")
        smf(OB_, VB[vb], PB); exps(PB, SB, 12)
    a("s_cbranch_scc1 L_epoch")
    a("s_nop 1")
    smf(OB_, VB[1]+4, PB+8)
    a("s_waitcnt lgkmcnt(0)")
    stamp("att", 4)
    a(f"s_add_u32 {sPB}, {sPB}, 8")
    a(f"s_lshl_b32 s58, {sRB}, 1\ns_add_u32 s58, s58, s10\ns_lshl_b32 s58, s58, 3\ns_add_u32 s58, s58, {sHG}\ns_mul_i32 s58, s58, 5120\ns_add_u32 s58, s58, {OBUF}")
    a(f"s_lshl_b32 s59, s11, 11\ns_add_u32 s59, s59, s58\ns_lshl_b32 s61, s11, 9\ns_add_u32 s58, s58, s61\ns_add_u32 s58, s58, 4096")
    a(f"v_lshlrev_b32 v146, 4, {vL}\ns_mov_b32 s68, 0x21800000\ns_mov_b32 s69, 0x5d800000")
    a(f"v_rcp_f32 v147, v{OA+12}\nv_cmp_nle_f32 vcc, s68, v{OA+12}\nv_cmp_nge_f32 s[62:63], s69, v{OA+12}\ns_or_b64 s[70:71], vcc, s[62:63]")
    for i in range(12): a(f"v_mul_f32 v{OA+i}, v{OA+i}, v147")
    for i in range(4): cvt(SA+i, OA+2*i, OA+2*i+1)
    for i in range(2): cvt(SA+8+i, OA+8+2*i, OA+9+2*i)
    a(f"buffer_store_dwordx4 {vr(SA,4)}, v146, {rWS}, s59 offen sc1")
    a(f"v_rcp_f32 v147, v{OB_+12}\nv_cmp_nle_f32 vcc, s68, v{OB_+12}\nv_cmp_nge_f32 s[62:63], s69, v{OB_+12}\ns_or_b64 s[70:71], s[70:71], vcc\ns_or_b64 s[70:71], s[70:71], s[62:63]")
    for i in range(12): a(f"v_mul_f32 v{OB_+i}, v{OB_+i}, v147")
    for i in range(4): cvt(SA+4+i, OB_+2*i, OB_+2*i+1)
    for i in range(2): cvt(SA+10+i, OB_+8+2*i, OB_+9+2*i)
    a(f"buffer_store_dwordx4 {vr(SA+4,4)}, v146, {rWS}, s59 offen offset:1024 sc1")
    a(f"s_mov_b32 exec_hi, 0\nbuffer_store_dwordx4 {vr(SA+8,4)}, v146, {rWS}, s58 offen sc1\ns_mov_b64 exec, -1")
    a(f"s_cmp_lg_u32 {sPASS}, 0\ns_cbranch_scc1 L_odone\ns_cmp_eq_u64 s[70:71], 0\ns_cbranch_scc1 L_odone")
    arrive(S_BAD)
    a("L_odone:\ns_waitcnt vmcnt(0) lgkmcnt(0)")
    stamp("att", 5)
    a("s_barrier")
    a(f"s_cmp_lg_u32 {sPASS}, 0\ns_cbranch_scc1 L_tail")
    a(f"ds_read_b32 {vT}, {vSY} offset:{S_BAD}\ns_waitcnt lgkmcnt(0)\nv_readfirstlane_b32 s60, {vT}\ns_cmp_eq_u32 s60, 0\ns_cbranch_scc1 L_tail")
    MA, MB = 146, 147
    a(f"s_mov_b32 {sPASS}, 1\nv_mov_b32 v{MA}, 0xff800000\nv_mov_b32 v{MB}, 0xff800000\ns_mov_b32 {sEP}, 0\nL_mx_e:\ns_mov_b32 m0, {sEP}\ns_nop 0\ns_movrels_b32 {sDK}, s80\ns_sub_u32 {sDK}, {sDK}, {8*TILE}")
    a(f"s_add_u32 s61, {sPB}, {sEP}\ns_add_u32 s61, s61, 1")
    wait_ge(S_FULL, "s61")
    a(f"s_mov_b32 {sTG}, 0\nL_mx_t:")
    a(f"ds_read_b128 {vr(KB1[0],4)}, v{aK1}\nds_read_b64 {vr(KB2[0],2)}, v{aK2}\ns_waitcnt lgkmcnt(0)")
    mfma32(SA, KB1[0], QA1, None); mfma32h(SA, KB2[0], QA2, SA)
    mfma32(SB, KB1[0], QB1, None); mfma32h(SB, KB2[0], QB2, SB)
    for i in range(8): a(f"v_max3_f32 v{MA}, v{MA}, v{SA+2*i}, v{SA+2*i+1}")
    for i in range(8): a(f"v_max3_f32 v{MB}, v{MB}, v{SB+2*i}, v{SB+2*i+1}")
    a(f"v_add_u32 v{aK1}, {TILE}, v{aK1}\nv_add_u32 v{aK2}, {TILE}, v{aK2}\ns_add_u32 {sTG}, {sTG}, 1\ns_cmp_lt_u32 {sTG}, 8\ns_cbranch_scc1 L_mx_t")
    arrive(S_FREE, vSW)
    a(f"v_add_u32 v{aK1}, {sDK}, v{aK1}\nv_add_u32 v{aK2}, {sDK}, v{aK2}")
    a(f"s_add_u32 {sEP}, {sEP}, 1\ns_cmp_lt_u32 {sEP}, 8\ns_cbranch_scc1 L_mx_e\ns_add_u32 {sPB}, {sPB}, 8")
    for M, Q2 in ((MA, QA2), (MB, QB2)):
        a(f"""v_mov_b32 v148, v{M}
v_permlane32_swap_b32 v{M}, v148
v_max_f32 v{M}, v{M}, v148
v_sub_f32 v{M}, 0, v{M}
v_and_b32 v148, 0xffff0000, v{M}
v_sub_f32 v{M}, v{M}, v148
v_and_b32 v149, 0xffff0000, v{M}
v_sub_f32 v{M}, v{M}, v149
v_lshrrev_b32 v148, 16, v148
v_or_b32 v148, v148, v149
v_lshrrev_b32 v149, 16, v{M}
v_cndmask_b32 v{Q2}, v{Q2}, v148, s[66:67]
v_cndmask_b32 v{Q2+1}, v{Q2+1}, v149, s[66:67]""")
    a("s_branch L_pass")
    a("L_notfull:"); wait_ge(S_FULL, sTG, 0); a("s_branch L_full")

def tail():
    AF, BF, AC, vA0, vA1, vO0, vO1 = 4, 104, 144, 164, 165, 100+64+2, 3
    a("L_tail:\ns_setprio 0")
    sNT, sKH = "s10", "s11"
    a(f"s_and_b32 {sNT}, {sW}, 3\ns_lshr_b32 {sKH}, {sW}, 2")
    a(f"""v_lshrrev_b32 v144, 4, {vL}
v_bfe_u32 v145, {vL}, 2, 2
v_and_b32 v146, 3, {vL}
v_lshrrev_b32 v147, 1, v144
v_and_b32 v148, 1, v144
v_mul_u32_u24 v149, 20, v147
v_lshl_add_u32 v149, v148, 2, v149
v_add_u32 v149, v149, v145
v_mul_u32_u24 v149, 160, v149
v_mul_u32_u24 v150, 80, v147
v_mul_u32_u24 v151, 40, v148
v_add3_u32 v150, v150, v151, v145
v_mul_u32_u24 v150, 160, v150
s_mul_i32 s12, {sKH}, {320*160}
s_add_u32 s12, s12, {WO}
v_lshlrev_b32 v146, 3, v146
v_add3_u32 v{vA0}, v149, v146, s12
s_add_u32 s12, s12, {16*160}
v_add3_u32 v{vA1}, v150, v146, s12""")
    def aread(st, dst):
        for mt in range(5):
            for jh in range(2):
                if st < 8: ad, off = vA0, ((st >> 1)*80 + (st & 1)*40 + 8*jh)*160 + 32*mt
                else: ad, off = vA1, ((st-8)*160 + 20*jh)*160 + 32*mt
                a(f"ds_read_b64_tr_b16 {vr(dst+4*mt+2*jh,2)}, v{ad} offset:{off}")
    for st in range(5): aread(st, AF+20*st)
    a(f"""v_and_b32 v145, 15, {vL}
v_lshlrev_b32 v145, 4, v145
v_lshl_add_u32 v145, v148, 9, v145
v_lshl_add_u32 v166, v147, 10, v145
v_mul_u32_u24 v147, 5120, v147
v_add_u32 {vT}, v147, v145
s_lshl_b32 s12, {sRB}, 1
s_lshr_b32 s13, {sNT}, 1
s_add_u32 s12, s12, s13
s_lshl_b32 s12, s12, 1
s_add_u32 s12, s12, {sKH}
s_mul_i32 s12, s12, 20480
s_and_b32 s13, {sNT}, 1
s_lshl_b32 s13, s13, 8
s_add_u32 s12, s12, s13
s_add_u32 s12, s12, {OBUF}""")
    for x in range(1, 4): a(f"s_add_u32 s{12+x}, s12, {5120*x}")
    a("s_add_u32 s58, s12, 4096\ns_add_u32 s59, s14, 4096")
    srd(44, pOUT, 2048*2560)
    for i in range(20): a(f"v_mov_b32 v{AC+i}, 0")
    a("s_waitcnt lgkmcnt(0)")
    stamp("tail", 20)
    a("s_barrier")
    stamp("tail", 21)
    for st in range(8): a(f"buffer_load_dwordx4 {vr(BF+4*st,4)}, v166, {rWS}, s{12+(st>>1)} offen offset:{2048*(st&1)} sc1")
    for st in range(2): a(f"buffer_load_dwordx4 {vr(BF+32+4*st,4)}, {vT}, {rWS}, s{58+st} offen sc1")
    for st in range(10):
        a(f"s_waitcnt vmcnt({9-st})")
        if st >= 5: a(f"s_waitcnt lgkmcnt({min(15, 10*(9-st))})")
        af = AF + 20*(st % 5)
        for mt in range(5): mfma16(AC+4*mt, af+4*mt, BF+4*st, AC+4*mt)
        if st < 5: aread(st+5, af)
    stamp("tail", 22)
    a(f"s_mul_i32 s12, {sNT}, 5120\nv_lshlrev_b32 v4, 4, {vL}\nv_add_u32 v4, s12, v4\ns_cmp_eq_u32 {sKH}, 0\ns_cbranch_scc1 L_red0")
    for mt in range(5): a(f"ds_write_b128 v4, {vr(AC+4*mt,4)} offset:{1024*mt}")
    a("s_waitcnt lgkmcnt(0)\ns_barrier")
    prof_flush()
    a("s_endpgm\nL_red0:")
    a(f"""v_and_b32 v5, 15, {vL}
v_lshrrev_b32 v6, 4, {vL}
v_mul_u32_u24 v5, 2560, v5
v_lshl_add_u32 v5, v6, 3, v5
s_lshl_b32 s12, {sRB}, 2
s_add_u32 s12, s12, {sNT}
s_mul_i32 s12, s12, {16*2560}
s_mul_i32 s13, {sHG}, 160
s_add_u32 s12, s12, s13
s_barrier""")
    for mt in range(5): a(f"ds_read_b128 {vr(8+4*mt,4)}, v4 offset:{1024*mt}")
    for mt in range(5):
        a(f"s_waitcnt lgkmcnt({4-mt})")
        for r in range(4): a(f"v_add_f32 v{AC+4*mt+r}, v{AC+4*mt+r}, v{8+4*mt+r}")
        cvt(32+2*mt, AC+4*mt, AC+4*mt+1); cvt(33+2*mt, AC+4*mt+2, AC+4*mt+3)
        a(f"buffer_store_dwordx2 {vr(32+2*mt,2)}, v5, {rA}, s12 offen offset:{32*mt}")
    if PROF: a("s_waitcnt vmcnt(0)")
    stamp("tail", 23)
    prof_flush()
    a("s_endpgm")

def unit_setup(XG, WG_):
    a(f"v_lshrrev_b32 v24, 4, {vL}\nv_and_b32 v25, 15, {vL}\ns_mul_i32 s12, {sRB}, 81920")
    for y in range(4):
        a(f"v_add_u32 v26, {4*y}, v24\nv_xor_b32 v27, v26, v25\nv_mul_u32_u24 v26, 1280, v26\nv_lshlrev_b32 v27, 4, v27\nv_add3_u32 v{XG+y}, v26, v27, s12")
    a(f"s_mul_i32 s12, {sHG}, 160\ns_and_b32 s12, s12, 0xffffffc0")
    for y in range(3):
        a(f"v_add_u32 v26, {64*y}, {vL}\nv_mul_u32_u24 v27, 43691, v26\nv_lshrrev_b32 v27, 19, v27\nv_mul_u32_u24 v28, 12, v27\nv_sub_u32 v28, v26, v28\nv_mul_u32_u24 v27, 1280, v27\nv_lshlrev_b32 v28, 4, v28\nv_add3_u32 v{WG_+y}, v27, v28, s12")
def unit_issue(XG, WG_, rX, rW, sN, sSlot):
    lx = a.lab("ux"); lw = a.lab("uw"); sk = a.lab("us")
    a(f"s_add_u32 s12, {sU0}, {sN}\ns_cmp_ge_u32 s12, 5\ns_cselect_b32 s13, 5, 0\ns_sub_u32 s12, s12, s13")
    a(f"s_lshl_b32 s13, s12, 8\ns_lshl_b32 s58, {sN}, 14\ns_mov_b32 s59, 0\n{lx}:\ns_cmp_eq_u32 s59, {sKVQ}\ns_cbranch_scc1 {sk}\ns_mov_b32 m0, s58")
    for y in range(4):
        a(f"buffer_load_dwordx4 v{XG+y}, {rX}, s13 offen lds")
        if y < 3: a("s_add_u32 m0, m0, 1024")
    a(f"{sk}:\ns_add_u32 s13, s13, 20480\ns_add_u32 s58, s58, 4096\ns_add_u32 s59, s59, 1\ns_cmp_lt_u32 s59, 4\ns_cbranch_scc1 {lx}")
    a(f"s_mul_i32 s13, s12, 163840\ns_mov_b32 m0, {sSlot}\ns_mov_b32 s59, 0\n{lw}:")
    for y in range(3):
        a(f"buffer_load_dwordx4 v{WG_+y}, {rW}, s13 offen lds\ns_add_u32 m0, m0, 1024")
    a(f"s_add_u32 s13, s13, 20480\ns_add_u32 s59, s59, 1\ns_cmp_lt_u32 s59, 8\ns_cbranch_scc1 {lw}")
    arrive(S_ISS)
    a(f"s_lshl_b32 s13, {sN}, 2\nv_add_u32 v24, s13, {vSY}\ns_waitcnt vmcnt(0)\ns_mov_b64 exec, 1\nds_add_u32 v24, {vONE} offset:{S_LQ}\ns_mov_b64 exec, -1")
def loader():
    a("L_loader:")
    if "--fix50" in sys.argv and "--first" not in sys.argv: a("s_memrealtime s[78:79]")
    a(f"v_mov_b32 v4, 0\nv_lshl_add_u32 v5, {vL}, 2, {vSY}\nds_write_b32 v5, v4\ns_waitcnt lgkmcnt(0)\ns_barrier\ns_setprio 3\nv_lshlrev_b32 v6, 4, {vL}\nv_lshlrev_b32 v7, 6, {vL}")
    a(f"s_mul_i32 s12, {sHG}, 160")
    for y in range(5):
        a(f"v_add_u32 v8, {64*y}, {vL}\nv_mul_u32_u24 v9, 52429, v8\nv_lshrrev_b32 v9, 19, v9\nv_mul_u32_u24 v16, 10, v9\nv_sub_u32 v16, v8, v16\nv_mul_u32_u24 v9, 1280, v9\nv_lshlrev_b32 v16, 4, v16\nv_add3_u32 v{10+y}, v9, v16, s12")
    unit_setup(32, 36)
    nonce_load()
    srd(40, pWS, WSZ); srd(44, pAX, 2048*1280); srd(48, pWQ, 640*1280)
    nonce()
    wait_ge(S_ISS, 4, 0); wait_ge(S_KVD, 2, 0)
    a(f"s_mov_b32 s14, 2\ns_mov_b32 s15, {WKV}")
    unit_issue(32, 36, rA, rB, "s14", "s15")
    srd(44, pWO, 640*1280)
    for e in range(8): a(f"s_mov_b32 s{80+e}, {SLOTS[e]}")
    sN, sE, sSL, sWOo, sWOl, sPASSL = "s12", "s13", "s14", "s15", "s56", "s57"
    a(f"s_mov_b32 {sN}, 0\ns_mov_b32 {sPASSL}, 0\ns_mov_b32 s68, 8")
    stamp("ld", 1)
    a("L_ld_e:")
    a(f"s_cmp_lt_u32 {sN}, 6\ns_cbranch_scc0 L_ld_wf\ns_cmp_lt_u32 {sN}, 2\ns_cselect_b32 s61, 3, 5")
    wait_min4(S_QB, "s61", 0, 20)
    a(f"s_branch L_ld_nf\nL_ld_wf:\ns_cmp_lt_u32 {sN}, 8\ns_cselect_b32 s61, 5, 1\ns_sub_u32 s61, {sN}, s61")
    wait_min4(S_FREE, "s61", 4, 20)
    a(f"L_ld_nf:\ns_add_u32 {sE}, {sXCD}, {sN}\ns_and_b32 {sE}, {sE}, 7\ns_cmp_lg_u32 {sPASSL}, 0\ns_cbranch_scc1 L_ld_np")
    a(f"s_cmp_gt_u32 {sN}, 1\ns_cbranch_scc1 L_ld_np\ns_cmp_eq_u32 {sN}, 1\ns_cbranch_scc1 L_ld_pa\ns_lshl_b32 s58, {sE}, 11\ns_add_u32 s58, s58, {FKV}\nv_and_b32 v8, 0x7ff, v7")
    poll("v8", ["s58"], 18, 0)
    a(f"s_mul_i32 s58, {sE}, {8*TILE}\ns_add_u32 s58, s58, {KVI}\ns_mov_b32 m0, {SLOT_A}\ns_mov_b32 s59, 0\nL_ld_0:")
    for y in range(3): a(f"buffer_load_dwordx4 v6, {rWS}, s58 offen sc1 lds\ns_add_u32 m0, m0, 1024\ns_add_u32 s58, s58, 1024")
    a("s_add_u32 s59, s59, 1\ns_cmp_lt_u32 s59, 7\ns_cbranch_scc1 L_ld_0\ns_branch L_ld_sig\nL_ld_pa:")
    for k in range(4): a(f"s_mov_b32 s{88+k}, {FKV+4096*k}")
    poll("v7", [f"s{88+k}" for k in range(4)], 40, 1)
    stamp("ld", 13)
    acquire()
    stamp("ld", 14)
    a(f"L_ld_np:\ns_and_b32 m0, {sN}, 7\ns_mul_i32 s58, {sE}, {8*TILE}\ns_movrels_b32 {sSL}, s80\ns_add_u32 s58, s58, {KVI}\ns_mov_b32 m0, {sSL}")
    a("s_mov_b32 s59, 0\nL_ld_1:")
    for y in range(3): a(f"buffer_load_dwordx4 v6, {rWS}, s58 offen{SC} lds\ns_add_u32 m0, m0, 1024\ns_add_u32 s58, s58, 1024")
    a("s_add_u32 s59, s59, 1\ns_cmp_lt_u32 s59, 7\ns_cbranch_scc1 L_ld_1\nL_ld_sig:\ns_waitcnt vmcnt(0)")
    arrive(S_FULL)
    if PROF:
        a(f"s_add_u32 s66, {sN}, 2\ns_and_b32 s66, s66, 31\ns_memrealtime s[64:65]\ns_waitcnt lgkmcnt(0)\ns_mov_b32 m0, s66\nv_writelane_b32 v167, s64, m0")
    a(f"s_add_u32 {sN}, {sN}, 1\ns_cmp_lt_u32 {sN}, s68\ns_cbranch_scc1 L_ld_e")
    a(f"s_sub_u32 s69, s68, 8")
    def wo_chunks(c0, n):
        l = a.lab("wo")
        a(f"s_mov_b32 m0, {WO+5120*c0}\ns_mov_b32 {sWOo}, {c0*32*1280}\ns_mov_b32 s59, 0\n{l}:")
        for y in range(5):
            a(f"buffer_load_dwordx4 v{10+y}, {rA}, {sWOo} offen lds\ns_add_u32 m0, m0, 1024")
        a(f"s_add_u32 {sWOo}, {sWOo}, {32*1280}\ns_add_u32 s59, s59, 1\ns_cmp_lt_u32 s59, {n}\ns_cbranch_scc1 {l}")
    for e, (c0, n) in ((2, (0, 4)), (3, (4, 4)), (4, (8, 4)), (5, (12, 4))):
        a(f"s_add_u32 s61, s69, {e+1}")
        wait_min4(S_FREE, "s61", 8, 20)
        wo_chunks(c0, n)
    wait_ge(S_HB, HB_RG_FREE, 8)
    wo_chunks(16, 4)
    stamp("ld", 11)
    a(f"s_cmp_lg_u32 {sPASSL}, 0\ns_cbranch_scc1 L_ld_b2\ns_cmp_lg_u32 s2, 0\ns_cbranch_scc1 L_ld_b2")
    a(f"s_mov_b32 s58, {XN}"); set_flag("s58", 18)
    a("L_ld_b2:\ns_waitcnt vmcnt(0)\ns_barrier")
    a(f"s_cmp_lg_u32 {sPASSL}, 0\ns_cbranch_scc1 L_ld_o")
    a(f"ds_read_b32 {vT}, {vSY} offset:{S_BAD}\ns_waitcnt lgkmcnt(0)\nv_readfirstlane_b32 s60, {vT}\ns_cmp_eq_u32 s60, 0\ns_cbranch_scc1 L_ld_o")
    a(f"s_mov_b32 {sPASSL}, 1\ns_mov_b32 s68, 24\ns_branch L_ld_e")
    a(f"L_ld_o:\ns_lshl_b32 s58, {sRB}, 3\ns_add_u32 s59, s58, {sHG}\ns_lshl_b32 s59, s59, 6\ns_add_u32 s59, s59, {FO}")
    set_flag("s59", 18)
    a(f"s_lshl_b32 s58, s58, 6\ns_add_u32 s58, s58, {FO}\nv_and_b32 v7, 7, {vL}\nv_lshlrev_b32 v7, 6, v7")
    poll("v7", ["s58"], 18, 0)
    stamp("ld", 12)
    a("s_barrier")
    if "--fix50" in sys.argv:
        a("s_barrier\nL_fx:\ns_memrealtime s[64:65]\ns_waitcnt lgkmcnt(0)\ns_sub_u32 s64, s64, s78\ns_cmp_lt_u32 s64, 5000\ns_cbranch_scc1 L_fx")
    prof_flush()
    a("s_endpgm")

def tload(dst, off, nq):
    for q in range(nq):
        o = off + 1024*q
        if q % 4 == 0: a(f"s_mov_b32 s59, {o}")
        a(f"buffer_load_dwordx4 {vr(dst+4*q,4)}, v4, {rC}, s59 offen offset:{1024*(q%4)}")
hb_count = [0]
def hbar(sleep=2):
    hb_count[0] += 4
    arrive(S_HB); wait_ge(S_HB, hb_count[0], sleep)
def cmul(dr, di, xr, xi, tc, ts, conj, tmp):
    a(f"v_mul_f32 v{tmp}, v{xi}, v{ts}\nv_mul_f32 v{tmp+1}, v{xr}, v{ts}")
    if not conj: a(f"v_fma_f32 v{dr}, v{xr}, v{tc}, v{tmp}\nv_fma_f32 v{di}, v{xi}, v{tc}, -v{tmp+1}")
    else: a(f"v_fma_f32 v{dr}, v{xr}, v{tc}, -v{tmp}\nv_fma_f32 v{di}, v{xi}, v{tc}, v{tmp+1}")
def helper():
    sP, sS0 = "s10", "s11"
    a(f"L_helper:\ns_setprio 2\ns_sub_u32 {sP}, {sW}, 4\ns_lshl_b32 {sS0}, {sXCD}, 5\ns_add_u32 {sS0}, {sS0}, {sI}")
    a(f"""v_lshlrev_b32 v4, 4, {vL}
v_lshrrev_b32 v5, 4, {vL}
v_and_b32 v6, 15, {vL}
s_and_b32 s56, {sHG}, 1
s_getpc_b64 s[52:53]
L_pc:
s_add_u32 s52, s52, L_tables-L_pc
s_addc_u32 s53, s53, 0
s_mov_b32 s54, {TB.BLOB.nbytes}
s_mov_b32 s55, 0x20000
s_cmp_lt_u32 {sP}, 2
s_cbranch_scc1 L_h_kv""")
    unit_setup(32, 36)
    a("s_waitcnt lgkmcnt(0)")
    nonce_load()
    srd(40, pWS, WSZ); srd(44, pAX, 2048*1280); srd(48, pWQ, 640*1280)
    a(f"s_sub_u32 s14, {sP}, 2\ns_mul_i32 s15, s14, {WB-WA}\ns_add_u32 s15, s15, {WA}")
    wait_ge(S_ISS, sP, 0)
    unit_issue(32, 36, rA, rB, "s14", "s15")
    a(f"s_add_u32 s61, {sP}, 3")
    wait_ge(S_ISS, "s61", 0)
    a(f"s_add_u32 s61, s14, 1\ns_add_u32 s14, s14, 3")
    wait_min4(S_QB, "s61", 0, 20)
    unit_issue(32, 36, rA, rB, "s14", "s15")
    nonce()
    a("s_branch L_h_b1")
    a(f"""L_h_kv:
s_setprio 3
s_lshl_b32 s12, {sKVQ}, 2
s_lshl1_add_u32 s12, {sP}, s12
s_lshl_b32 s13, s12, 2
v_add_u32 v7, s13, v5
v_and_b32 v8, 15, v7
v_xor_b32 v9, v8, v6
v_xor_b32 v8, 4, v9
v_mul_u32_u24 v7, 1280, v7
v_lshlrev_b32 v9, 4, v9
v_lshlrev_b32 v8, 4, v8
s_mul_i32 s13, {sRB}, 81920
v_add3_u32 v9, v7, v9, s13
s_add_u32 s13, s13, 5120
v_add3_u32 v8, v7, v8, s13
s_lshl_b32 s12, s12, 10
s_waitcnt lgkmcnt(0)
s_cmp_eq_u32 s56, 0
s_cselect_b32 s48, s{pWK}, s{pWV}
s_cselect_b32 s49, s{pWK+1}, s{pWV+1}
s_mov_b32 s50, 25600
s_mov_b32 s51, 0x20000""")
    srd(44, pAX, 2048*1280)
    a(f"s_lshl_b32 s13, {sP}, 10\ns_add_u32 m0, s13, {WKV}\ns_mov_b32 s14, {sU0}")
    for y in range(13):
        if y == 12: a(f"s_cmp_lg_u32 {sP}, 0\ns_cbranch_scc1 L_h_nw")
        a(f"buffer_load_dwordx4 v4, {rB}, s13 offen lds")
        if y < 12: a("s_add_u32 m0, m0, 2048\ns_add_u32 s13, s13, 2048")
    a("L_h_nw:")
    for n in range(5):
        a(f"s_add_u32 m0, s12, {X0+16384*n}\ns_lshl_b32 s15, s14, 8\nbuffer_load_dwordx4 v9, {rA}, s15 offen lds\ns_add_u32 m0, m0, 1024\ns_nop 0\nbuffer_load_dwordx4 v8, {rA}, s15 offen lds")
        if n < 4: next_u("s14")
    arrive(S_ISS)
    nonce_load()
    srd(40, pWS, WSZ)
    XK, WK_, FB, AC = 8, 12, [16, 48], 80
    a(f"s_lshl_b32 s12, {sKVQ}, 12\nv_lshlrev_b32 v12, 8, v6\nv_add_u32 v12, s12, v12")
    for k in range(4): a(f"v_or_b32 v13, {4*k}, v5\nv_xor_b32 v13, v13, v6\nv_lshl_add_u32 v{XK+k}, v13, 4, v12")
    a(f"""v_bfe_u32 v12, {vL}, 2, 2
v_lshl_add_u32 v12, v5, 3, v12
v_mul_u32_u24 v12, 40, v12
v_and_b32 v13, 3, {vL}
v_lshlrev_b32 v13, 3, v13
s_cmp_eq_u32 {sP}, 0
s_cselect_b32 s12, -1, 0
s_cselect_b32 s13, 0, 32
s_add_u32 s13, s13, {WKV}
v_and_b32 v13, s12, v13
v_add3_u32 v13, v12, v13, s13
s_mov_b32 s14, {sU0}""")
    for i in range(4): a(f"v_mov_b32 v{AC+i}, 0")
    nonce()
    a("s_waitcnt vmcnt(0)")
    stamp("h", 1)
    arrive(S_KVL)
    wait_ge(S_KVL, 2, 0)
    def kvrd(n):
        f = FB[n & 1]
        a(f"s_mul_i32 s15, s14, 5120\nv_add_u32 v{WK_}, s15, v13")
        for k in range(4):
            if n == 4: a(f"v_add_u32 v{XK+k}, 65536, v{XK+k}")
            a(f"ds_read_b128 {vr(f+8*k,4)}, v{XK+k} offset:{16384*(n%4)}")
            for jh in range(2): a(f"ds_read_b64_tr_b16 {vr(f+8*k+4+2*jh,2)}, v{WK_} offset:{(32*k+4*jh)*40}")
        next_u("s14")
    for typ in range(2):
        if typ == 0: a("s_cmp_lg_u32 s56, 0\ns_cbranch_scc1 L_h_vtype")
        else: a("L_h_vtype:")
        kvrd(0)
        for n in range(5):
            a("s_waitcnt lgkmcnt(0)")
            if n < 4: kvrd(n+1)
            else: arrive(S_KVD)
            f = FB[n & 1]
            for k in range(4):
                if typ == 0: mfma16(AC, f+8*k+4, f+8*k, AC)
                else: mfma16(AC, f+8*k, f+8*k+4, AC)
        a(f"s_lshl_b32 s12, {sRB}, 1\ns_lshr_b32 s13, {sHG}, 2\ns_add_u32 s12, s12, s13\ns_mul_i32 s12, s12, {TILE}\ns_add_u32 s12, s12, {KVI}\ns_and_b32 s13, {sKVQ}, 1")
        a("v_lshrrev_b32 v8, 1, v5\nv_and_b32 v9, 1, v5")
        if typ == 0:
            c = math.log2(math.e)/math.sqrt(20.0)
            import struct
            cb = struct.unpack("<I", struct.pack("<f", c))[0]
            a(f"""s_lshl_b32 s13, s13, 4
v_add_u32 v10, s13, v6
v_lshlrev_b32 v11, 4, v10
v_lshl_add_u32 v11, v8, 9, v11
v_lshl_add_u32 v11, v9, 3, v11
v_lshlrev_b32 v10, 3, v10
v_add_u32 v10, 1024, v10
s_cmp_eq_u32 {sP}, 0
s_cselect_b64 vcc, -1, 0
s_cselect_b64 s[62:63], -1, 0xffff
v_cndmask_b32 v10, v10, v11, vcc""")
            for i in range(4): a(f"v_mul_f32 v{AC+i}, {hex(cb)}, v{AC+i}")
            cvt(14, AC, AC+1); cvt(15, AC+2, AC+3)
            a("s_branch L_h_kvst")
        else:
            a(f"""s_mul_i32 s15, s13, 640
s_add_u32 s15, s15, 1280
v_lshlrev_b32 v10, 4, v6
v_lshl_add_u32 v10, v9, 3, v10
v_add_u32 v10, s15, v10
v_lshl_add_u32 v11, v8, 8, v10
v_lshl_add_u32 v10, v8, 6, v10
v_add_u32 v10, 512, v10
s_cmp_eq_u32 {sP}, 0
s_cselect_b64 vcc, -1, 0
s_mov_b32 s62, 0x00ff00ff
s_cmp_eq_u32 s13, 0
s_cselect_b32 s62, s62, 0x000f000f
s_cmp_eq_u32 {sP}, 0
s_cselect_b32 s62, -1, s62
s_mov_b32 s63, s62
v_cndmask_b32 v10, v10, v11, vcc""")
            cvt(14, AC, AC+1); cvt(15, AC+2, AC+3)
            a(f"""s_cbranch_scc1 L_h_kvst
v_subrev_u32 v8, 4, v6
v_lshl_add_u32 v8, v8, 2, v5
v_lshlrev_b32 v9, 3, v8
v_add_u32 v9, 2560, v9
v_cmp_lt_u32 vcc, 3, v6
v_mov_b32 v11, 0x3f803f80
v_mov_b32 v12, 0x3f80
v_mov_b32 v13, 0
v_cndmask_b32 v10, v10, v9, vcc
v_cndmask_b32 v14, v14, v13, vcc
v_cndmask_b32 v15, v15, v13, vcc
v_cmp_eq_u32 vcc, 0, v8
v_lshrrev_b32 v8, 1, v8
v_cndmask_b32 v14, v14, v11, vcc
v_cndmask_b32 v15, v15, v12, vcc
v_cmp_eq_u32 vcc, 1, v8
s_nop 1
v_cndmask_b32 v14, v14, v11, vcc
v_cndmask_b32 v15, v15, v11, vcc""")
    a(f"L_h_kvst:\ns_mov_b64 exec, s[62:63]\nbuffer_store_dwordx2 v[14:15], v10, {rWS}, s12 offen sc1\ns_mov_b64 exec, -1")
    a(f"s_lshl_b32 s12, {sRB}, 3\ns_add_u32 s12, s12, {sHG}\ns_lshl_b32 s12, s12, 6\ns_add_u32 s12, s12, {FKV}")
    stamp("h", 2)
    a(f"s_waitcnt vmcnt(0)\ns_cmp_eq_u32 {sP}, 0\ns_cbranch_scc1 L_h_kvf")
    arrive(S_KVS)
    a("s_branch L_h_kvd\nL_h_kvf:")
    wait_ge(S_KVS, 1, 0)
    set_flag("s12", 16)
    a("L_h_kvd:")
    a("s_setprio 2")
    stamp("h", 3)
    a("L_h_b1:")
    C32, S32, N32, TW, F20, M3 = 8, 16, 24, 32, 56, 76
    AD, RE, IM, BO, TMP, WRAW = 80, 96, 112, 128, 140, 148
    vGB, vPL = "v7", "v164"
    sI0 = "s71"
    srd(44, pBX, 2048*1280)
    a(f"""s_lshl_b32 s12, {sP}, 8
s_add_u32 s12, s12, {sS0}
s_mul_i32 s12, s12, 1280
v_add_u32 v144, s12, v4
v_add_u32 v145, 1024, v144
v_add_u32 v146, {1024*1280-256}, v144
v_cmp_lt_u32 vcc, 15, {vL}
v_add_u32 v147, 1024, v146
s_mul_i32 s13, {sP}, 2560
s_add_u32 s13, s13, {BX}
v_cndmask_b32 v145, v145, v146, vcc
v_lshl_add_u32 {vGB}, v5, 6, v6
v_lshlrev_b32 {vPL}, 6, {vL}
s_mul_i32 {sI0}, {sP}, 3
s_cmp_eq_u32 {sP}, 3
s_cselect_b32 {sI0}, 8, {sI0}
s_mul_i32 s14, {sRB}, 10
s_mul_i32 s15, {sHG}, 321
s_add_u32 s14, s14, s15
s_and_b32 s70, s14, 1
s_add_u32 s70, s70, {sI0}
s_lshr_b32 s14, s14, 1
s_lshl_b32 s73, s14, 2""")
    wait_ge(S_FULL, 3, 4)
    stamp("h", 4)
    a(f"s_mov_b32 m0, s13\ns_nop 0\nbuffer_load_dwordx4 v144, {rA}, 0 offen lds\ns_add_u32 m0, m0, 1024\ns_nop 0\nbuffer_load_dwordx4 v145, {rA}, 0 offen lds")
    a(f"s_add_u32 m0, m0, 1024\ns_mov_b32 exec_hi, 0\nbuffer_load_dwordx4 v147, {rA}, 0 offen lds\ns_mov_b64 exec, -1")
    tload(C32, TB.OFF["C32_0"], 18)
    a(f"""v_bfe_u32 v144, {vL}, 2, 2
v_lshrrev_b32 v140, 5, {vL}
v_lshl_add_u32 v144, v140, 2, v144
v_mul_u32_u24 v144, 40, v144
v_and_b32 v146, 3, {vL}
v_lshlrev_b32 v146, 3, v146
v_bfe_u32 v147, {vL}, 4, 1
v_cmp_eq_u32 vcc, 1, v147
v_mov_b32 v147, 32
v_and_b32 v141, 31, {vL}
v_cndmask_b32 v146, v146, v147, vcc
v_add3_u32 v144, v144, v146, s13
v_mul_u32_u24 v145, 320, v140
v_add_u32 v145, v145, v141
s_lshl_b32 s12, {sP}, 2
s_add_u32 s12, s12, {ZS}
v_lshl_add_u32 v145, v145, 4, s12
s_lshl_b32 s12, {sP}, 5
v_add_u32 v146, s12, v141
v_mul_u32_u24 v147, {4*1408}, v140
v_lshl_add_u32 v147, v146, 2, v147
v_add_u32 v147, {RG}, v147
v_cmp_lt_u32 s[66:67], 31, {vL}
s_waitcnt vmcnt(18)""")
    for k in range(4):
        for jh in range(2): a(f"ds_read_b64_tr_b16 {vr(AD+4*k+2*jh,2)}, v144 offset:{1280*(k>>1) + 640*(k&1) + 320*jh}")
    a("s_waitcnt vmcnt(0) lgkmcnt(0)")
    stamp("h", 30)
    for k, (tr, ti) in enumerate(((C32, N32), (C32+4, N32+4), (S32, C32), (S32+4, C32+4))):
        mfma32(RE, AD+4*k, tr, RE if k else None); mfma32(IM, AD+4*k, ti, IM if k else None)
    for r in range(12): cmul(RE+r, IM+r, RE+r, IM+r, TW+r, TW+12+r, False, TMP+2*(r & 1))
    for i in range(4): cvt(BO+i, RE+2*i, RE+2*i+1)
    for i in range(4): cvt(BO+4+i, IM+2*i, IM+2*i+1)
    for i in range(2): cvt(BO+8+i, RE+8+2*i, RE+9+2*i)
    for i in range(2): cvt(BO+10+i, IM+8+2*i, IM+9+2*i)
    for k, (tr, ti) in enumerate(((F20, F20+8), (F20+4, F20), (F20+12, F20+16))):
        mfma32(RE, tr, BO+4*k, RE if k else None); mfma32(IM, ti, BO+4*k, IM if k else None)
    for r in range(10):
        cvt(AD+r, RE+r, IM+r); a(f"ds_write_b32 v145, v{AD+r} offset:{512*r}")
    stamp("h", 31)
    hbar()
    stamp("h", 32)
    a("v_mov_b32 v142, 0")
    for q in range(3):
        a(f"v_add_u32 v140, {128*q}, v146\nv_sub_u32 v141, 640, v140\nv_cmp_eq_u32 vcc, 0, v140\nv_cndmask_b32 v141, v141, v142, vcc\nv_cndmask_b32 v140, v140, v141, s[66:67]\nv_lshlrev_b32 v140, 4, v140")
        a(f"ds_read_b128 {vr(BO+4*q,4)}, v140 offset:{ZS}")
    a("s_waitcnt lgkmcnt(0)")
    DD = [RE, IM, AD]
    for q in range(3): mfma32(DD[q], M3, BO+4*q, None)
    a(f"s_mul_i32 s13, {sS0}, {TP}\ns_add_u32 s13, s13, {TBUF}\ns_mul_i32 s14, {sP}, 3072\ns_add_u32 s13, s13, s14\ns_add_u32 s14, s14, {RG}\nv_add_u32 v140, s14, v4")
    for q in range(3):
        if q == 2: a(f"s_cmp_eq_u32 {sP}, 3\ns_cbranch_scc1 L_b1_sk")
        for t in range(4):
            cvt(BO+4*q+t, DD[q]+2*t, DD[q]+2*t+1)
            a(f"ds_write_b32 v147, v{BO+4*q+t} offset:{512*q+1408*t}")
    a("L_b1_sk:")
    hbar()
    for q in range(3): a(f"ds_read_b128 {vr(BO+4*q,4)}, v140 offset:{1024*q}")
    for q in range(3):
        if q == 2: a(f"s_cmp_eq_u32 {sP}, 3\ns_cbranch_scc1 L_b1_s2")
        a(f"s_waitcnt lgkmcnt({2-q})\nbuffer_store_dwordx4 {vr(BO+4*q,4)}, v4, {rWS}, s13 offen offset:{1024*q} sc1")
    a("L_b1_s2:")
    stamp("h", 33)
    G_, TF, TI, H_, F16, TM = 8, 16, 24, 32, 40, 48
    WF, OUTR, AT, R2 = 64, 88, 104, 116
    srd(44, pWR, 2048*642); srd(48, pWI, 2048*642)
    a(f"v_lshrrev_b32 v140, 1, {vL}\nv_mul_u32_u24 v140, {8*642}, v140\nv_and_b32 v141, 1, {vL}\nv_lshl_add_u32 v140, v141, 4, v140")
    a(f"s_mul_i32 s14, {sP}, {64*8*642}\ns_add_u32 s73, s73, s14\ns_add_u32 s74, s73, {32*8*642}\ns_lshl_b32 s14, {sP}, 11\ns_add_u32 s14, s14, {RG}")
    a("s_waitcnt vmcnt(0) lgkmcnt(0)")
    stamp("h", 5)
    hbar()
    a(f"s_cmp_lg_u32 {sP}, 0\ns_cbranch_scc1 L_b2_nf\ns_lshl_b32 s58, s2, 6\ns_add_u32 s58, s58, {FB1}")
    set_flag("s58", 60)
    a(f"L_b2_nf:")
    for z, rr in enumerate((rA, rB)):
        a(f"s_add_u32 m0, s14, {8192*z}\nbuffer_load_dwordx4 v140, {rr}, s73 offen lds\ns_add_u32 m0, m0, 1024\nbuffer_load_dwordx4 v140, {rr}, s74 offen lds")
    a(f"s_lshl_b32 s59, {sHG}, 13\ns_add_u32 s59, s59, {TB.OFF['B2_0']}")
    for q in range(8):
        if q == 4: a("s_add_u32 s59, s59, 4096")
        a(f"buffer_load_dwordx4 {vr(G_+4*q,4)}, v4, {rC}, s59 offen offset:{1024*(q%4)}")
    tload(F16, TB.OFF["F16"], 2)
    for i in range(24): a(f"v_mov_b32 v{WF+i}, 0")
    a(f"s_mul_i32 s14, {sHG}, 1408\ns_mul_i32 s15, {sRB}, 40\ns_add_u32 s14, s14, s15\ns_add_u32 s14, s14, {TBUF}\ns_mul_i32 s15, {sP}, {64*TP}\ns_add_u32 s14, s14, s15\ns_mov_b32 s15, {TP}")
    for y in range(3):
        a(f"v_add_u32 v141, {64*y}, {vL}\nv_mul_u32_u24 v142, 43691, v141\nv_lshrrev_b32 v142, 17, v142\nv_mul_u32_u24 v143, 3, v142\nv_sub_u32 v143, v141, v143\nv_mul_lo_u32 v142, v142, s15\nv_lshl_add_u32 v{144+y}, v143, 4, v142")
    a(f"v_lshlrev_b32 v140, 5, {vGB}\ns_lshl_b32 s15, s70, 1\ns_add_u32 s15, s15, {RG}\nv_add_u32 v140, s15, v140\nv_mul_u32_u24 v147, 48, {vGB}\ns_lshl_b32 s15, {sI0}, 2\ns_add_u32 s15, s15, {RG}\nv_add_u32 v147, s15, v147")
    a("s_waitcnt vmcnt(10)")
    stamp("h", 34)
    hbar()
    for t in range(3):
        for z in range(2):
            for r in range(4): a(f"ds_read_u16_d16_hi v{WF+8*t+4*z+r}, v140 offset:{8192*z+512*r+2*t}")
    a(f"s_cmp_lg_u32 {sP}, 0\ns_cbranch_scc1 L_b2_np")
    for k in range(4): a(f"s_mov_b32 s{72+k}, {FB1+4096*k}")
    poll(vPL, ["s72", "s73", "s74", "s75"], 52, 16)
    stamp("h", 41)
    acquire()
    a("L_b2_np:")
    hbar(8)
    stamp("h", 6)
    a(f"s_mul_i32 s15, {sP}, 3072\ns_add_u32 m0, s15, {RG}")
    for y in range(3):
        a(f"buffer_load_dwordx4 v{144+y}, {rWS}, s14 offen{SC} lds")
        if y < 2: a("s_add_u32 m0, m0, 1024")
    stamp("h", 35)
    a("s_waitcnt vmcnt(0)")
    hbar()
    for t in range(3):
        for r in range(4): a(f"ds_read_b32 v{AT+4*t+r}, v147 offset:{768*r+4*t}")
    a("s_waitcnt lgkmcnt(0)")
    arrive(S_HB)
    stamp("h", 36)
    def tw_stage(tc, ts, conj, first_im):
        for t in range(3):
            re, im = R2+8*t, R2+8*t+4
            for r in range(4):
                c_, s_ = (tc(t)+r, ts(t)+r)
                cmul(re+r, im+r, re+r, im+r, c_, s_, conj, TM+2*(r & 1))
            x, y = (im, re) if first_im else (re, im)
            cvt(AT+4*t, x, x+1); cvt(AT+4*t+1, x+2, x+3); cvt(AT+4*t+2, y, y+1); cvt(AT+4*t+3, y+2, y+3)
    for t in range(3): mfma16(R2+8*t, AT+4*t, G_, None); mfma16(R2+8*t+4, AT+4*t, G_+4, None)
    tw_stage(lambda t: TF, lambda t: TF+4, False, False)
    for t in range(3): mfma16(R2+8*t, F16, AT+4*t, None); mfma16(R2+8*t+4, F16+4, AT+4*t, None)
    tw_stage(lambda t: WF+8*t, lambda t: WF+8*t+4, True, True)
    for t in range(3): mfma16(R2+8*t, AT+4*t, F16+4, None); mfma16(R2+8*t+4, AT+4*t, F16, None)
    tw_stage(lambda t: TI, lambda t: TI+4, True, False)
    for t in range(3): mfma16(R2+8*t, H_, AT+4*t, None); mfma16(R2+8*t+4, H_+4, AT+4*t, None)
    a(f"s_lshl_b32 s14, {sHG}, 5\ns_add_u32 s14, s14, {sRB}\ns_mul_i32 s14, s14, {UP}\ns_mul_i32 s15, {sP}, 3072\ns_add_u32 s14, s14, s15\ns_add_u32 s14, s14, {UBUF}\ns_add_u32 s15, s15, {RG}\nv_add_u32 v140, s15, v4")
    hb_count[0] += 4; wait_ge(S_HB, hb_count[0], 1)
    for t in range(3):
        for r in range(4):
            cvt(OUTR+4*t+r, R2+8*t+r, R2+8*t+4+r)
            a(f"ds_write_b32 v147, v{OUTR+4*t+r} offset:{768*r+4*t}")
    hbar()
    for q in range(3): a(f"ds_read_b128 {vr(OUTR+4*q,4)}, v140 offset:{1024*q}")
    for q in range(3): a(f"s_waitcnt lgkmcnt({2-q})\nbuffer_store_dwordx4 {vr(OUTR+4*q,4)}, v4, {rWS}, s14 offen offset:{1024*q} sc1")
    global HB_RG_FREE
    HB_RG_FREE = hb_count[0] + 4
    stamp("h", 37)
    M3I, I20, TW3 = 32, 36, 56
    BO, DD, AD, RE, IM, AX = 88, [100, 116, 132], 88, 100, 116, 132
    vN, vH = "v148", "v149"
    tload(C32, TB.OFF["C32_0"], 6); tload(M3I, TB.OFF["M3I"], 14)
    a(f"""v_and_b32 {vN}, 31, {vL}
v_lshrrev_b32 {vH}, 5, {vL}
s_lshl_b32 s12, {sP}, 5
v_add_u32 v150, s12, {vN}
s_mul_i32 s13, {sS0}, 48
s_add_u32 s13, s13, {UBUF}
s_add_u32 s14, s13, {32*UP}
s_add_u32 s15, s13, {64*UP}
s_add_u32 s57, s13, {96*UP}
v_mul_u32_u24 v151, {128*UP}, {vH}
v_mov_b32 v165, 640""")
    for q in range(3):
        a(f"""v_add_u32 v152, {128*q}, v150
v_min_u32 v153, 320, v152
v_mul_u32_u24 v154, 52429, v153
v_lshrrev_b32 v154, 19, v154
v_min_u32 v154, 31, v154
v_mul_u32_u24 v154, {UP-40}, v154
v_lshl_add_u32 v153, v153, 2, v151
v_add_u32 v{156+q}, v153, v154
v_sub_u32 v155, 640, v152
v_cmp_lt_u32 vcc, 320, v152
v_cndmask_b32 v152, v152, v155, s[66:67]
v_cndmask_b32 v152, v152, v165, vcc
v_lshlrev_b32 v{160+q}, 4, v152""")
    a("s_waitcnt vmcnt(20)")
    stamp("h", 7)
    hbar()
    a(f"s_cmp_lg_u32 {sP}, 0\ns_cbranch_scc1 L_b3_np\ns_lshl_b32 s58, s2, 6\ns_add_u32 s58, s58, {FB2}")
    set_flag("s58", 100)
    for k in range(4): a(f"s_mov_b32 s{72+k}, {FB2+4096*k}")
    poll(vPL, ["s72", "s73", "s74", "s75"], 104, 16)
    stamp("h", 42)
    acquire()
    a("L_b3_np:")
    hbar(8)
    stamp("h", 8)
    for q in range(3):
        for t in range(4): a(f"buffer_load_dword v{BO+4*q+t}, v{156+q}, {rWS}, {['s13','s14','s15','s57'][t]} offen{SC}")
    stamp("h", 38)
    a("s_waitcnt vmcnt(0)")
    stamp("h", 39)
    for q in range(3): mfma32(DD[q], M3I, BO+4*q, None)
    a(f"v_cmp_eq_u32 s[62:63], 0, {vN}\ns_cmp_eq_u32 {sP}, 0\ns_cbranch_scc1 L_b3_f0\ns_cmp_eq_u32 {sP}, 2\ns_cbranch_scc1 L_b3_f2\ns_branch L_b3_fd")
    for lab, q in (("L_b3_f0", 0), ("L_b3_f2", 2)):
        a(f"{lab}:\ns_nop 11")
        for r in range(8):
            d = DD[q]+r
            a(f"v_mov_b32 v152, v{d}\nv_mov_b32 v153, v{d}\nv_permlane32_swap_b32 v152, v153\nv_add_f32 v152, v152, v153\nv_mul_f32 v152, 0.5, v152\nv_cndmask_b32 v{d}, v{d}, v152, s[62:63]")
        if q == 0: a("s_branch L_b3_fd")
    a("L_b3_fd:\ns_nop 8")
    for q in range(3):
        for t in range(4): cvt(BO+4*q+t, DD[q]+2*t, DD[q]+2*t+1)
        a(f"ds_write_b128 v{160+q}, {vr(BO+4*q,4)} offset:{ZS}")
    a(f"v_mul_u32_u24 v151, 320, {vH}\nv_add_u32 v151, v151, {vN}\ns_lshl_b32 s12, {sP}, 2\ns_add_u32 s12, s12, {ZS}\nv_lshl_add_u32 v151, v151, 4, s12")
    srd(44, pOUT, 2048*2560)
    a(f"s_lshl_b32 s12, {sP}, 8\ns_add_u32 s12, s12, {sS0}\ns_mul_i32 s12, s12, 2560\ns_add_u32 s12, s12, 1280\ns_add_u32 s13, s12, {1024*2560}\nv_mul_u32_u24 v150, 40, {vN}\nv_lshl_add_u32 v150, {vH}, 3, v150")
    hbar()
    stamp("h", 40)
    for r in range(10): a(f"ds_read_b32 v{AD+r}, v151 offset:{512*r}")
    a("s_waitcnt lgkmcnt(0)")
    mfma32(RE, AD, I20, None); mfma32(IM, AD, I20+8, None)
    mfma32(RE, AD+4, I20+4, RE); mfma32(IM, AD+4, I20+12, IM)
    mfma32h(RE, AD+8, I20+16, RE); mfma32h(IM, AD+8, I20+18, IM)
    for r in range(16): cmul(RE+r, IM+r, RE+r, IM+r, TW3+r, TW3+16+r, True, 152+2*(r & 1))
    for i in range(8): cvt(AX+i, RE+2*i, RE+2*i+1)
    for i in range(8): cvt(AX+8+i, IM+2*i, IM+2*i+1)
    for k, (tr, ti) in enumerate(((C32, S32), (C32+4, S32+4), (N32, C32), (N32+4, C32+4))):
        mfma32(RE, AX+4*k, tr, RE if k else None); mfma32(IM, AX+4*k, ti, IM if k else None)
    for z, (D, so) in enumerate(((RE, "s12"), (IM, "s13"))):
        for G in range(3):
            o = 88 + 6*z + 2*G
            cvt(o, D+4*G, D+4*G+1); cvt(o+1, D+4*G+2, D+4*G+3)
            if G == 2: a("s_mov_b32 exec_hi, 0")
            a(f"buffer_store_dwordx2 {vr(o,2)}, v150, {rA}, {so} offen offset:{16*G}")
            if G == 2: a("s_mov_b64 exec, -1")
    stamp("h", 10)
    a("s_waitcnt lgkmcnt(0)\ns_barrier")
    a(f"ds_read_b32 {vT}, {vSY} offset:{S_BAD}\ns_waitcnt lgkmcnt(0)\nv_readfirstlane_b32 s60, {vT}\ns_cmp_eq_u32 s60, 0\ns_cbranch_scc1 L_tail\ns_barrier\ns_branch L_tail")

prologue()
att_head()
att_main()
tail()
helper()
loader()
a("L_exit:\ns_endpgm")
body = a.finish()
hdr = f"""; MQA attention (heads 32 x 20) + output projection, and a 2-D real-FFT filter, in one launch.
; @launch grid=(256,1,1) block=(576,1,1) lds={LDS_BYTES}
.amdgcn_target "amdgcn-amd-amdhsa--gfx950"
.text
.globl {NAME}_kernel
.p2align 8
.type {NAME}_kernel,@function
{NAME}_kernel:
"""
tab = ".p2align 8\n.type L_tables,@object\nL_tables:\n"
B = TB.BLOB
for i in range(0, len(B), 8): tab += ".long " + ",".join(f"0x{x:x}" for x in B[i:i+8]) + "\n"
tab += f".size L_tables, {B.nbytes}\n"
ftr = f""".section .rodata,"a"
.p2align 6
.amdhsa_kernel {NAME}_kernel
  .amdhsa_next_free_vgpr 168
  .amdhsa_next_free_sgpr 96
  .amdhsa_accum_offset 168
  .amdhsa_group_segment_fixed_size 0
  .amdhsa_kernarg_size 88
  .amdhsa_user_sgpr_count 2
  .amdhsa_user_sgpr_kernarg_segment_ptr 1
  .amdhsa_system_sgpr_workgroup_id_x 1
.end_amdhsa_kernel
"""
open(OUT, "w").write(hdr + body + tab + ftr)
print("wrote", OUT, len(hdr + body + tab + ftr), "bytes;", len(a.l), "lines")
```

```python
import sys, math, struct
from asmlib import Asm
import tables as TB

NAME = "concat_heads__grouped_kv_mqa__spectral_gfnet__prompt"
PROF = "--prof" in sys.argv
SC = "" if ("--inv" in sys.argv or "--plain" in sys.argv) else " sc1"
OUT = [a for a in sys.argv[1:] if not a.startswith("--")]
OUT = OUT[0] if OUT else f"cdna_kernels/{NAME}.s"

X0, WA, WB, WKV = 0, 81920, 106496, 137728
SLOT_A, SLOT_B = 0, 141824
ZS, WO, BX, SY = 21504, 32768, 124928, 163328
LDS_BYTES = 163840
S_KVL, S_KVD, S_FULL, S_HB, S_BAD, S_ISS, S_LQ, S_KVS, S_QB, S_FREE, S_OST, S_WOK = 0, 4, 12, 20, 24, 28, 32, 52, 64, 80, 56, 60
SLOTS = [SLOT_A, SLOT_B] + [WO + 21504*k for k in range(4)] + [SLOT_A, SLOT_B]
TILE = 2688
RG = 118784
TP, UP = 11392, 12416
XN, FKV, FB1, FB2, FO = 0, 0x1000, 0x10000, 0x14000, 0x18000
KVI, OBUF, TBUF, UBUF, WSZ = 0x20000, 0x80000, 0x300000, 0x600000, 0xA00000
PROFOFF = 0xA00000
if PROF: WSZ = 0xB00000
sW, sXCD, sI, sRB, sHG, sU0, sKVQ = "s3", "s4", "s5", "s6", "s7", "s8", "s9"
pAX, pWQ, pWK, pWV, pWO, pBX, pWR, pWI, pOUT, pDBG, pWS = 16, 18, 20, 22, 24, 26, 28, 30, 32, 34, 36
NON = "s[38:39]"
rWS, rA, rB, rC = "s[40:43]", "s[44:47]", "s[48:51]", "s[52:55]"
vL, vSY, vONE, vT = "v0", "v1", "v2", "v3"
POLLAT = int([x for x in sys.argv if x.startswith("--pollat=")][0][9:]) if any(x.startswith("--pollat=") for x in sys.argv) else 3
B1AT = int([x for x in sys.argv if x.startswith("--b1at=")][0][7:]) if any(x.startswith("--b1at=") for x in sys.argv) else 3
def opt(name, d):
    x = [v for v in sys.argv if v.startswith(f"--{name}=")]
    return int(x[0].split("=")[1], 0) if x else d
BSL, HPRIO = opt("bsleep", 0), opt("hprio", 2)
OSC = {0: "", 1: " sc1", 2: " nt", 3: " sc0 sc1", 4: " sc1 nt"}[opt("osc", 0)]
a = Asm()
def vr(b, n): return f"v[{b}:{b+n-1}]" if n > 1 else f"v{b}"
def srd(base, ptr, size):
    a(f"s_mov_b32 s{base}, s{ptr}\ns_mov_b32 s{base+1}, s{ptr+1}\ns_mov_b32 s{base+2}, {hex(size)}\ns_mov_b32 s{base+3}, 0x20000")
def arrive(off, va=vSY, val=vONE):
    a(f"s_mov_b64 exec, 1\nds_add_u32 {va}, {val} offset:{off}\ns_mov_b64 exec, -1")
def wait_min4(off, tgt, sleep, vq):
    l = a.lab("w"); d = a.lab("wd")
    a(f"{l}:\nds_read_b128 {vr(vq,4)}, {vSY} offset:{off}\ns_waitcnt lgkmcnt(0)\nv_min3_u32 v{vq}, v{vq}, v{vq+1}, v{vq+2}\nv_min_u32 v{vq}, v{vq}, v{vq+3}\nv_readfirstlane_b32 s60, v{vq}\ns_cmp_ge_u32 s60, {tgt}\ns_cbranch_scc1 {d}\n{spin(d)}s_sleep {sleep}\ns_branch {l}\n{d}:")
def spin(d):
    return f"s_cmp_eq_u32 s76, 0\ns_cbranch_scc1 {d}\ns_sub_u32 s76, s76, 1\n"
def wait_ge(off, tgt, sleep=1, va=vSY):
    l = a.lab("w"); d = a.lab("wd")
    a(f"{l}:\nds_read_b32 {vT}, {va} offset:{off}\ns_waitcnt lgkmcnt(0)\nv_readfirstlane_b32 s60, {vT}\ns_cmp_ge_u32 s60, {tgt}\ns_cbranch_scc1 {d}\n{spin(d)}s_sleep {sleep}\ns_branch {l}\n{d}:")
def wait_ost(tgt):
    l = a.lab("w"); d = a.lab("wd")
    a(f"{l}:\nds_read_b32 {vT}, {vSY} offset:{S_OST}\ns_waitcnt lgkmcnt(0)\nv_readfirstlane_b32 s60, {vT}\ns_and_b32 s59, s60, 0xff\ns_cmp_ge_u32 s59, {tgt}\ns_cbranch_scc1 {d}\n{spin(d)}s_branch {l}\n{d}:")
def nonce_load():
    a(f"s_load_dwordx2 s[38:39], s[{pWS}:{pWS+1}], {XN}")
def nonce():
    a("s_waitcnt lgkmcnt(0)")
    a("s_mul_i32 s38, s38, 0x9E3779B1\ns_add_u32 s38, s38, 0x7F4A7C15\ns_mul_i32 s39, s39, 0x2C9277B5\ns_add_u32 s39, s39, 0x5851F42D")
def set_flag(soff, v0_):
    a(f"v_mov_b32 v{v0_}, s38\nv_mov_b32 v{v0_+1}, s39\nv_mov_b32 v{v0_+2}, 0\ns_mov_b64 exec, 1")
    a(f"buffer_store_dwordx2 {vr(v0_,2)}, v{v0_+2}, {rWS}, {soff} offen sc1\ns_mov_b64 exec, -1")
def poll(vaddr, soffs, vd, sleep):
    l = a.lab("p"); d = a.lab("pd")
    a(f"{l}:")
    for k, so in enumerate(soffs): a(f"buffer_load_dwordx2 {vr(vd+2*k,2)}, {vaddr}, {rWS}, {so} offen sc1")
    a("s_waitcnt vmcnt(0)")
    a(f"v_cmp_ne_u64 vcc, {NON}, {vr(vd,2)}")
    for k in range(1, len(soffs)):
        a(f"v_cmp_ne_u64 s[62:63], {NON}, {vr(vd+2*k,2)}\ns_or_b64 vcc, vcc, s[62:63]")
    a(f"s_cbranch_vccz {d}\n{spin(d)}s_sleep {sleep}\ns_branch {l}\n{d}:")
def acquire():
    if "--inv" in sys.argv: a("buffer_inv sc1\ns_waitcnt vmcnt(0)")
prof_n = {}
def stamp(role, idx):
    if not PROF: return
    a(f"s_memrealtime s[64:65]\ns_waitcnt lgkmcnt(0)\nv_writelane_b32 v167, s64, {idx}")
def cstamp(idx):
    if not PROF: return
    a(f"s_memtime s[64:65]\ns_waitcnt lgkmcnt(0)\nv_writelane_b32 v167, s64, {idx}")
def prof_flush():
    if not PROF: return
    if "--dbgout" in sys.argv:
        l = a.lab("nd")
        a(f"s_or_b32 s64, s2, {sW}\ns_cmp_lg_u32 s64, 0\ns_cbranch_scc1 {l}")
        srd(48, pDBG, 256)
        a("v_readlane_b32 s64, v167, 0\nv_readlane_b32 s65, v167, 20\nv_writelane_b32 v167, s65, 6\nv_readlane_b32 s65, v167, 21\nv_writelane_b32 v167, s65, 7\nv_readlane_b32 s65, v167, 22\nv_writelane_b32 v167, s65, 8\nv_readlane_b32 s65, v167, 23\nv_writelane_b32 v167, s65, 9")
        a(f"v_subrev_u32 v167, s64, v167\nv_lshlrev_b32 v166, 2, {vL}\nbuffer_store_dword v167, v166, {rB}, 0 offen\ns_waitcnt vmcnt(0)\n{l}:")
        return
    a("v_writelane_b32 v167, s76, 63")
    a(f"s_mul_i32 s64, s2, 9\ns_add_u32 s64, s64, {sW}\ns_lshl_b32 s64, s64, 8\ns_add_u32 s64, s64, {PROFOFF}\nv_lshlrev_b32 v166, 2, {vL}")
    a(f"buffer_store_dword v167, v166, {rWS}, s64 offen\ns_waitcnt vmcnt(0)")
def mfma32(d, A, B, C): a(f"v_mfma_f32_32x32x16_bf16 {vr(d,16)}, {vr(A,4)}, {vr(B,4)}, {vr(C,16) if C is not None else 0}")
def mfma32h(d, A, B, C): a(f"v_mfma_f32_32x32x8_bf16 {vr(d,16)}, {vr(A,2)}, {vr(B,2)}, {vr(C,16) if C is not None else 0}")
def mfma16(d, A, B, C): a(f"v_mfma_f32_16x16x32_bf16 {vr(d,4)}, {vr(A,4)}, {vr(B,4)}, {vr(C,4) if C is not None else 0}")
def cvt(d, x, y): a(f"v_cvt_pk_bf16_f32 v{d}, v{x}, v{y}")
def next_u(s):
    a(f"s_add_u32 {s}, {s}, 1\ns_cmp_eq_u32 {s}, 5\ns_cselect_b32 {s}, 0, {s}")

def prologue():
    if "--first" in sys.argv: a("s_memrealtime s[78:79]")
    a(f"""s_cmp_ge_u32 s2, 256
s_cbranch_scc1 L_exit
s_load_dwordx16 s[16:31], s[0:1], 0
s_load_dwordx4 s[32:35], s[0:1], 64
s_load_dwordx2 s[36:37], s[0:1], 80
v_lshrrev_b32 v1, 6, v0
v_and_b32 v0, 63, v0
v_readfirstlane_b32 {sW}, v1
s_and_b32 {sXCD}, s2, 7
s_lshr_b32 {sI}, s2, 3
s_lshr_b32 {sRB}, {sI}, 3
s_lshl2_add_u32 {sRB}, {sXCD}, {sRB}
s_and_b32 {sHG}, {sI}, 7
s_lshr_b32 {sKVQ}, {sHG}, 1
s_and_b32 {sU0}, {sRB}, 3
s_add_u32 {sU0}, {sU0}, {sHG}
s_cmp_ge_u32 {sU0}, 5
s_cselect_b32 s10, 5, 0
s_sub_u32 {sU0}, {sU0}, s10
s_cmp_ge_u32 {sU0}, 5
s_cselect_b32 s10, 5, 0
s_sub_u32 {sU0}, {sU0}, s10
v_mov_b32 {vSY}, {SY}
v_mov_b32 {vONE}, 1
s_mov_b32 s76, 0x40000""")
    if PROF: a("v_mov_b32 v167, 0")
    stamp("all", 0)
    a(f"s_cmp_ge_u32 {sW}, 8\ns_cbranch_scc1 L_loader\ns_cmp_lt_u32 {sW}, 4\ns_cbranch_scc1 L_att")

QA1, QA2, QB1, QB2 = 4, 8, 10, 14
OA, OB_, SA, SB, PA, PB = 16, 32, 48, 64, 80, 96
KB1 = [112, 116]; KB2 = [120, 122]; VB = [124, 132]
aK1, aK2, aV0, aV1, vIDX, vSW = 140, 141, 142, 143, 144, "v145"
def wpat(WG_, t0):
    a(f"s_mul_i32 s12, {sHG}, 160\ns_and_b32 s12, s12, 0xffffffc0")
    for y in range(3):
        a(f"v_add_u32 v{t0}, {64*y}, {vL}\nv_mul_u32_u24 v{t0+1}, 43691, v{t0}\nv_lshrrev_b32 v{t0+1}, 19, v{t0+1}\nv_mul_u32_u24 v{t0+2}, 12, v{t0+1}\nv_sub_u32 v{t0+2}, v{t0}, v{t0+2}\nv_mul_u32_u24 v{t0+1}, 1280, v{t0+1}\nv_lshlrev_b32 v{t0+2}, 4, v{t0+2}\nv_add3_u32 v{WG_+y}, v{t0+1}, v{t0+2}, s12")
def att_head():
    XG, WG_, XA, WAa = 148, 149, 154, 162
    AC0, AC1 = 16, 32
    FB = [48, 60, 72, 84]
    sQH, sHP = "s10", "s11"
    a(f"L_att:\ns_and_b32 {sQH}, {sW}, 1\ns_lshr_b32 {sHP}, {sW}, 1\ns_lshl_b32 s12, {sW}, 2\nv_add_u32 {vSW}, s12, {vSY}")
    if "--pf" in sys.argv:
        a(f"""s_getpc_b64 s[52:53]
L_pc0:
s_sub_u32 s52, s52, L_pc0-{NAME}_kernel
s_subb_u32 s53, s53, 0
s_mov_b32 s54, L_tables-{NAME}_kernel+{TB.BLOB.nbytes}
s_mov_b32 s55, 0x20000
s_lshl_b32 s13, {sI}, 2
s_add_u32 s13, s13, {sW}
s_and_b32 s13, s13, 15
s_lshl_b32 s13, s13, 13
v_lshlrev_b32 v4, 7, {vL}
buffer_load_dword v152, v4, {rC}, s13 offen""")
    a(f"v_lshrrev_b32 v4, 4, {vL}\nv_and_b32 v5, 15, {vL}\nv_add_u32 v4, s12, v4\nv_xor_b32 v5, v4, v5\nv_mul_u32_u24 v4, 1280, v4\nv_lshlrev_b32 v5, 4, v5\ns_mul_i32 s13, {sRB}, 81920\nv_add3_u32 v{XG}, v4, v5, s13")
    wpat(WG_, 4)
    a("s_waitcnt lgkmcnt(0)")
    srd(44, pAX, 2048*1280); srd(48, pWQ, 640*1280); srd(40, pWS, WSZ)
    if "--touch" in sys.argv:
        a(f"s_mov_b64 exec, 1\nbuffer_load_dword v152, v{WG_}, {rB}, 0 offen\nv_mov_b32 v153, {FKV-64}\nbuffer_load_dword v152, v153, {rWS}, 0 offen\ns_mov_b64 exec, -1")
    a(f"s_mov_b32 s12, {sU0}\ns_lshl_b32 s56, {sW}, 10\ns_mul_i32 s57, {sW}, 6144\ns_mul_i32 s58, {sW}, 40960")
    a("s_barrier")
    for n in range(1):
        a("s_lshl_b32 s13, s12, 8")
        for qd in range(4):
            sk = a.lab("sk")
            a(f"s_cmp_eq_u32 {sKVQ}, {qd}\ns_cbranch_scc1 {sk}\ns_add_u32 m0, s56, {X0+16384*n+4096*qd}\ns_add_u32 s14, s13, {20480*qd}\nbuffer_load_dwordx4 v{XG}, {rA}, s14 offen lds\n{sk}:")
        a(f"s_mul_i32 s13, s12, 163840\ns_add_u32 s13, s13, s58\ns_add_u32 s14, s13, 20480\ns_add_u32 m0, s57, {[WA, WB][n]}")
        for y in range(6):
            a(f"buffer_load_dwordx4 v{WG_+y%3}, {rB}, {'s13' if y < 3 else 's14'} offen lds")
            if y < 5: a("s_add_u32 m0, m0, 1024")
    arrive(S_ISS)
    stamp("att", 15)
    a(f"v_and_b32 v4, 31, {vL}\nv_lshrrev_b32 v5, 5, {vL}\nv_and_b32 v6, 15, {vL}\ns_lshl_b32 s14, {sQH}, 13\nv_lshlrev_b32 v4, 8, v4\nv_add_u32 v4, s14, v4")
    for k in range(8):
        a(f"v_or_b32 v7, {2*k}, v5\nv_xor_b32 v7, v7, v6\nv_lshl_add_u32 v{XA+k}, v7, 4, v4")
    a(f"""v_bfe_u32 v4, {vL}, 4, 1
v_cmp_eq_u32 vcc, 0, v4
v_mov_b32 v7, 0x38282020
v_mov_b32 v8, 0x18081000
v_and_b32 v9, 3, {vL}
v_lshlrev_b32 v9, 3, v9
v_cndmask_b32 v7, v7, v8, vcc
v_bfe_u32 v7, v7, v9, 8
v_mov_b32 v8, 0x48484030
v_bfe_u32 v8, v8, v9, 8
v_bfe_u32 v9, {vL}, 2, 2
v_lshl_add_u32 v9, v5, 3, v9
v_mul_u32_u24 v9, 192, v9
s_and_b32 s14, {sHG}, 1
s_lshl_b32 s14, s14, 5
s_mul_i32 s15, {sHP}, 80
s_add_u32 s14, s14, s15
s_add_u32 s14, s14, {WA}
v_add3_u32 v{WAa}, v9, v7, s14
v_add3_u32 v{WAa+1}, v9, v8, s14""")
    for i in range(32): a(f"v_mov_b32 v{AC0+i}, 0")
    sN = "s12"
    def rdl(k):
        f = FB[k % 4]; kk = k % 8
        l = [f"ds_read_b128 {vr(f,4)}, v{XA+kk}"]
        for t in range(2):
            for jh in range(2):
                l.append(f"ds_read_b64_tr_b16 {vr(f+4+4*t+2*jh,2)}, v{WAa+t} offset:{(16*kk+4*jh)*192}")
        l.append(f"v_add_u32 v{XA+kk}, 16384, v{XA+kk}")
        return l
    def rd(k):
        for x in rdl(k): a(x)
    for n, d in enumerate((WB-WA, WKV-WB, WA-WKV, WB-WA, 0)): a(f"s_mov_b32 s{80+n}, {d & 0xffffffff}")
    a(f"s_mov_b32 {sN}, 0\nv_mov_b32 v148, {SY+4}\ns_mov_b32 s61, 3\ns_waitcnt vmcnt(0)")
    arrive(S_LQ)
    wait_ge(S_KVL, 4, 0)
    stamp("att", 1)
    wait_ge(S_LQ, 4, 0)
    stamp("att", 10)
    rd(0); rd(1)
    a("L_qloop:")
    for k in range(8):
        if k == 6:
            a(f"s_mov_b32 m0, {sN}\ns_waitcnt lgkmcnt(0)\nv_readfirstlane_b32 s60, {vT}\ns_movrels_b32 s14, s80")
            arrive(S_QB, vSW)
            a(f"v_add_u32 v{WAa}, s14, v{WAa}\nv_add_u32 v{WAa+1}, s14, v{WAa+1}\ns_cmp_lt_u32 s60, s61\ns_cbranch_scc1 L_qwait\nL_qgo:")
            if PROF: a(f"s_add_u32 s13, {sN}, 11\ns_memrealtime s[64:65]\ns_memtime s[62:63]\ns_waitcnt lgkmcnt(0)\ns_mov_b32 m0, s13\nv_writelane_b32 v167, s64, m0\ns_add_u32 m0, m0, 30\ns_nop 0\nv_writelane_b32 v167, s62, m0")
        elif k != 7: a("s_waitcnt lgkmcnt(5)")
        f = FB[k % 4]; r = rdl(k+2)
        mfma32(AC0, f+4, f, AC0); a(r[0]); a(r[1]); a(r[5])
        mfma32(AC1, f+8, f, AC1); a(r[2]); a(r[3]); a(r[4])
        if k == 5: a(f"ds_read_b32 {vT}, v148 offset:{S_LQ}")
    a(f"v_add_u32 v148, 4, v148\ns_add_u32 {sN}, {sN}, 1\ns_cmp_eq_u32 {sN}, 4\ns_cselect_b32 s61, 0, s61\ns_cmp_lt_u32 {sN}, 5\ns_cbranch_scc1 L_qloop\ns_waitcnt lgkmcnt(0)")
    stamp("att", 2)
    a(f"""v_lshlrev_b32 v{aK1}, 4, {vL}
v_add_u32 v{aK1}, {SLOT_A}, v{aK1}
v_and_b32 v150, 31, {vL}
v_lshrrev_b32 v151, 5, {vL}
v_lshlrev_b32 v152, 3, v150
v_add_u32 v152, {SLOT_A+1024}, v152
v_mov_b32 v153, {SLOT_A+2560}
v_cmp_lt_u32 s[66:67], 31, {vL}
v_lshlrev_b32 v154, 4, v150
v_lshl_add_u32 v155, v151, 8, v154
v_cndmask_b32 v{aK2}, v152, v153, s[66:67]
v_lshl_add_u32 v156, v151, 6, v154
v_add_u32 v156, 256, v156
v_cmp_lt_u32 vcc, 15, v150
v_and_b32 v157, 27, v150
v_cndmask_b32 v155, v155, v156, vcc
v_add_u32 v155, {SLOT_A+1280}, v155
v_add_u32 v156, 640, v155
v_cmp_eq_u32 vcc, 24, v157
v_mov_b32 v158, {SLOT_A+2560+32}
v_mov_b32 v159, {SLOT_A+2560+16}
v_cndmask_b32 v158, v158, v159, vcc
v_cmp_lt_u32 vcc, 19, v150
v_mov_b32 v{vIDX}, 0xdddd
v_mov_b32 v157, 0
v_cndmask_b32 v{aV0}, v155, v158, vcc
v_cndmask_b32 v{aV1}, v156, v158, vcc""")
    for i in range(4): cvt(QA1+i, AC0+2*i, AC0+2*i+1)
    for i in range(2): cvt(QA2+i, AC0+8+2*i, AC0+9+2*i)
    for i in range(2): cvt(QB1+i, AC0+12+2*i, AC0+13+2*i)
    for i in range(2): cvt(QB1+2+i, AC1+2*i, AC1+1+2*i)
    for i in range(2): cvt(QB2+i, AC1+4+2*i, AC1+5+2*i)
    for r in (QA2, QA2+1, QB2, QB2+1): a(f"v_cndmask_b32 v{r}, v{r}, v157, s[66:67]")

sPB, sEP, sTG, sDK, sDV, sPASS = "s12", "s13", "s14", "s15", "s56", "s57"
def smf(O, V, P): a(f"v_smfmac_f32_32x32x32_bf16 {vr(O,16)}, {vr(V,4)}, {vr(P,8)}, v{vIDX}")
def exps(P, S, i0):
    for i in range(i0, i0+4): a(f"v_exp_f32 v{P+i}, v{S+i}")
DELTA = [(SLOTS[(e+1) % 8] - SLOTS[e]) & 0xffffffff for e in range(8)]
def att_main():
    for e in range(9): a(f"s_mov_b32 s{80+e}, {DELTA[e % 8]}")
    a(f"s_mov_b32 {sPB}, 0\ns_mov_b32 {sPASS}, 0\nL_pass:")
    a(f"s_add_u32 s61, {sPB}, 2")
    for i in range(32): a(f"v_mov_b32 v{OA+i}, 0")
    for i in range(8): a(f"v_mov_b32 v{PB+8+i}, 0")
    for i in range(4): a(f"v_mov_b32 v{VB[1]+4+i}, 0")
    wait_ge(S_FULL, "s61", 0)
    stamp("att", 3); cstamp(24)
    for j in range(2):
        a(f"ds_read_b128 {vr(KB1[j],4)}, v{aK1} offset:{j*TILE}\nds_read_b64 {vr(KB2[j],2)}, v{aK2} offset:{j*TILE}")
    a(f"ds_read_b128 {vr(VB[0],4)}, v{aV0}\nds_read_b128 {vr(VB[0]+4,4)}, v{aV1}")
    a(f"s_mov_b32 {sEP}, 0\ns_mov_b32 {sDK}, {DELTA[0]}\ns_waitcnt lgkmcnt(4)")
    mfma32(SA, KB1[0], QA1, None); mfma32h(SA, KB2[0], QA2, SA)
    a(f"s_add_u32 {sTG}, {sPB}, 4\ns_nop 7\ns_nop 1\n.p2align 3\nL_epoch:")
    for j in range(8):
        kb, vb = j & 1, j & 1
        jk = (j+2) % 8; jv = (j+1) % 8
        mfma32(SB, KB1[kb], QB1, None); exps(PA, SA, 0)
        mfma32h(SB, KB2[kb], QB2, SB); exps(PA, SA, 4)
        smf(OB_, VB[1-vb]+4, PB+8); exps(PA, SA, 8)
        a("s_waitcnt lgkmcnt(0)")
        if j == 6:
            a(f"v_readfirstlane_b32 s60, {vT}\nv_add_u32 v{aK1}, {sDK}, v{aK1}\nv_add_u32 v{aK2}, {sDK}, v{aK2}\ns_cmp_lt_u32 s60, {sTG}\ns_cbranch_scc1 L_notfull\nL_full:")
        smf(OA, VB[vb], PA); a(f"ds_read_b128 {vr(KB1[kb],4)}, v{aK1} offset:{jk*TILE}"); exps(PA, SA, 12)
        mfma32(SA, KB1[1-kb], QA1, None); a(f"ds_read_b64 {vr(KB2[kb],2)}, v{aK2} offset:{jk*TILE}"); exps(PB, SB, 0)
        if j == 7: a(f"v_add_u32 v{aV0}, {sDK}, v{aV0}\nv_add_u32 v{aV1}, {sDK}, v{aV1}")
        mfma32h(SA, KB2[1-kb], QA2, SA); a(f"ds_read_b128 {vr(VB[1-vb],4)}, v{aV0} offset:{jv*TILE}"); exps(PB, SB, 4)
        smf(OA, VB[vb]+4, PA+8); a(f"ds_read_b128 {vr(VB[1-vb]+4,4)}, v{aV1} offset:{jv*TILE}")
        if j == 6: arrive(S_FREE, vSW)
        if j == 5: a(f"ds_read_b32 {vT}, {vSY} offset:{S_FULL}")
        exps(PB, SB, 8)
        if j == 7:
            a(f"s_add_u32 {sEP}, {sEP}, 1\ns_mov_b32 m0, {sEP}\ns_cmp_lt_u32 {sEP}, 7\ns_cselect_b32 s59, 2, 0\ns_add_u32 {sTG}, {sTG}, s59\ns_movrels_b32 {sDK}, s80\ns_cmp_lt_u32 {sEP}, 8")
        smf(OB_, VB[vb], PB); exps(PB, SB, 12)
    a("s_cbranch_scc1 L_epoch")
    a("s_nop 1")
    smf(OB_, VB[1]+4, PB+8)
    a("s_waitcnt lgkmcnt(0)")
    stamp("att", 4); cstamp(25)
    a(f"s_add_u32 {sPB}, {sPB}, 16")
    a(f"s_lshl_b32 s58, {sRB}, 1\ns_add_u32 s58, s58, s10\ns_lshl_b32 s58, s58, 3\ns_add_u32 s58, s58, {sHG}\ns_mul_i32 s58, s58, 5120\ns_add_u32 s58, s58, {OBUF}")
    a(f"s_lshl_b32 s59, s11, 11\ns_add_u32 s59, s59, s58\ns_lshl_b32 s61, s11, 9\ns_add_u32 s58, s58, s61\ns_add_u32 s58, s58, 4096")
    a(f"v_lshlrev_b32 v146, 4, {vL}\ns_mov_b32 s68, 0x21800000\ns_mov_b32 s69, 0x5d800000")
    a(f"v_rcp_f32 v147, v{OA+12}\nv_cmp_nle_f32 vcc, s68, v{OA+12}\nv_cmp_nge_f32 s[62:63], s69, v{OA+12}\ns_or_b64 s[70:71], vcc, s[62:63]")
    for i in range(12): a(f"v_mul_f32 v{OA+i}, v{OA+i}, v147")
    for i in range(4): cvt(SA+i, OA+2*i, OA+2*i+1)
    for i in range(2): cvt(SA+8+i, OA+8+2*i, OA+9+2*i)
    a(f"buffer_store_dwordx4 {vr(SA,4)}, v146, {rWS}, s59 offen sc1")
    a(f"v_rcp_f32 v147, v{OB_+12}\nv_cmp_nle_f32 vcc, s68, v{OB_+12}\nv_cmp_nge_f32 s[62:63], s69, v{OB_+12}\ns_or_b64 s[70:71], s[70:71], vcc\ns_or_b64 s[70:71], s[70:71], s[62:63]")
    for i in range(12): a(f"v_mul_f32 v{OB_+i}, v{OB_+i}, v147")
    for i in range(4): cvt(SA+4+i, OB_+2*i, OB_+2*i+1)
    for i in range(2): cvt(SA+10+i, OB_+8+2*i, OB_+9+2*i)
    a(f"buffer_store_dwordx4 {vr(SA+4,4)}, v146, {rWS}, s59 offen offset:1024 sc1")
    a(f"s_mov_b32 exec_hi, 0\nbuffer_store_dwordx4 {vr(SA+8,4)}, v146, {rWS}, s58 offen sc1\ns_mov_b64 exec, -1")
    a(f"s_cmp_eq_u64 s[70:71], 0\ns_cselect_b32 s58, 1, 0x101\nv_mov_b32 v147, s58\ns_lshl_b32 s61, {sPASS}, 2\ns_add_u32 s61, s61, 4\ns_waitcnt vmcnt(0)")
    a(f"s_mov_b64 exec, 1\nds_add_u32 {vSY}, v147 offset:{S_OST}\ns_mov_b64 exec, -1")
    stamp("att", 5)
    wait_ost("s61")
    a(f"s_cmp_lg_u32 {sPASS}, 0\ns_cbranch_scc1 L_tail\ns_cmp_lt_u32 s60, 0x100\ns_cbranch_scc1 L_tail")
    MA, MB = 146, 147
    a(f"s_mov_b32 {sPASS}, 1\nv_mov_b32 v{MA}, 0xff800000\nv_mov_b32 v{MB}, 0xff800000\ns_mov_b32 {sEP}, 0\nL_mx_e:\ns_mov_b32 m0, {sEP}\ns_nop 0\ns_movrels_b32 {sDK}, s80\ns_sub_u32 {sDK}, {sDK}, {8*TILE}")
    a(f"s_lshl1_add_u32 s61, {sEP}, {sPB}\ns_add_u32 s61, s61, 2")
    wait_ge(S_FULL, "s61")
    a(f"s_mov_b32 {sTG}, 0\nL_mx_t:")
    a(f"ds_read_b128 {vr(KB1[0],4)}, v{aK1}\nds_read_b64 {vr(KB2[0],2)}, v{aK2}\ns_waitcnt lgkmcnt(0)")
    mfma32(SA, KB1[0], QA1, None); mfma32h(SA, KB2[0], QA2, SA)
    mfma32(SB, KB1[0], QB1, None); mfma32h(SB, KB2[0], QB2, SB)
    for i in range(8): a(f"v_max3_f32 v{MA}, v{MA}, v{SA+2*i}, v{SA+2*i+1}")
    for i in range(8): a(f"v_max3_f32 v{MB}, v{MB}, v{SB+2*i}, v{SB+2*i+1}")
    a(f"v_add_u32 v{aK1}, {TILE}, v{aK1}\nv_add_u32 v{aK2}, {TILE}, v{aK2}\ns_add_u32 {sTG}, {sTG}, 1\ns_cmp_lt_u32 {sTG}, 8\ns_cbranch_scc1 L_mx_t")
    arrive(S_FREE, vSW)
    a(f"v_add_u32 v{aK1}, {sDK}, v{aK1}\nv_add_u32 v{aK2}, {sDK}, v{aK2}")
    a(f"s_add_u32 {sEP}, {sEP}, 1\ns_cmp_lt_u32 {sEP}, 8\ns_cbranch_scc1 L_mx_e\ns_add_u32 {sPB}, {sPB}, 16")
    for M, Q2 in ((MA, QA2), (MB, QB2)):
        a(f"""v_mov_b32 v148, v{M}
v_permlane32_swap_b32 v{M}, v148
v_max_f32 v{M}, v{M}, v148
v_sub_f32 v{M}, 0, v{M}
v_and_b32 v148, 0xffff0000, v{M}
v_sub_f32 v{M}, v{M}, v148
v_and_b32 v149, 0xffff0000, v{M}
v_sub_f32 v{M}, v{M}, v149
v_lshrrev_b32 v148, 16, v148
v_or_b32 v148, v148, v149
v_lshrrev_b32 v149, 16, v{M}
v_cndmask_b32 v{Q2}, v{Q2}, v148, s[66:67]
v_cndmask_b32 v{Q2+1}, v{Q2+1}, v149, s[66:67]""")
    a("s_branch L_pass")
    a("L_qwait:"); wait_ge(S_LQ, "s61", 0, "v148"); a("s_branch L_qgo")
    a("L_notfull:"); wait_ge(S_FULL, sTG, 0); a("s_branch L_full")

def tail():
    AF, BF, AC, vA0, vA1, vO0, vO1 = 4, 104, 144, 164, 165, 100+64+2, 3
    a("L_tail:\ns_setprio 0")
    sNT, sKH = "s10", "s11"
    a(f"s_and_b32 {sNT}, {sW}, 3\ns_lshr_b32 {sKH}, {sW}, 2")
    a(f"""v_lshrrev_b32 v144, 4, {vL}
v_bfe_u32 v145, {vL}, 2, 2
v_and_b32 v146, 3, {vL}
v_lshrrev_b32 v147, 1, v144
v_and_b32 v148, 1, v144
v_mul_u32_u24 v149, 20, v147
v_lshl_add_u32 v149, v148, 2, v149
v_add_u32 v149, v149, v145
v_mul_u32_u24 v149, 160, v149
v_mul_u32_u24 v150, 80, v147
v_mul_u32_u24 v151, 40, v148
v_add3_u32 v150, v150, v151, v145
v_mul_u32_u24 v150, 160, v150
s_mul_i32 s12, {sKH}, {320*160}
s_add_u32 s12, s12, {WO}
v_lshlrev_b32 v146, 3, v146
v_add3_u32 v{vA0}, v149, v146, s12
s_add_u32 s12, s12, {16*160}
v_add3_u32 v{vA1}, v150, v146, s12""")
    def aread(st, dst):
        for mt in range(5):
            for jh in range(2):
                if st < 8: ad, off = vA0, ((st >> 1)*80 + (st & 1)*40 + 8*jh)*160 + 32*mt
                else: ad, off = vA1, ((st-8)*160 + 20*jh)*160 + 32*mt
                a(f"ds_read_b64_tr_b16 {vr(dst+4*mt+2*jh,2)}, v{ad} offset:{off}")
    wait_ge(S_WOK, 1, 1)
    for st in range(5): aread(st, AF+20*st)
    a(f"""v_and_b32 v145, 15, {vL}
v_lshlrev_b32 v145, 4, v145
v_lshl_add_u32 v145, v148, 9, v145
v_lshl_add_u32 v166, v147, 10, v145
v_mul_u32_u24 v147, 5120, v147
v_add_u32 {vT}, v147, v145
s_lshl_b32 s12, {sRB}, 1
s_lshr_b32 s13, {sNT}, 1
s_add_u32 s12, s12, s13
s_lshl_b32 s12, s12, 1
s_add_u32 s12, s12, {sKH}
s_mul_i32 s12, s12, 20480
s_and_b32 s13, {sNT}, 1
s_lshl_b32 s13, s13, 8
s_add_u32 s12, s12, s13
s_add_u32 s12, s12, {OBUF}""")
    for x in range(1, 4): a(f"s_add_u32 s{12+x}, s12, {5120*x}")
    a("s_add_u32 s58, s12, 4096\ns_add_u32 s59, s14, 4096")
    srd(44, pOUT, 2048*2560)
    for i in range(20): a(f"v_mov_b32 v{AC+i}, 0")
    a("s_waitcnt lgkmcnt(0)")
    stamp("tail", 20)
    a("s_barrier")
    stamp("tail", 21)
    for st in range(8): a(f"buffer_load_dwordx4 {vr(BF+4*st,4)}, v166, {rWS}, s{12+(st>>1)} offen offset:{2048*(st&1)} sc1")
    for st in range(2): a(f"buffer_load_dwordx4 {vr(BF+32+4*st,4)}, {vT}, {rWS}, s{58+st} offen sc1")
    for st in range(10):
        a(f"s_waitcnt vmcnt({9-st})")
        if st >= 5: a(f"s_waitcnt lgkmcnt({min(15, 10*(9-st))})")
        af = AF + 20*(st % 5)
        for mt in range(5): mfma16(AC+4*mt, af+4*mt, BF+4*st, AC+4*mt)
        if st < 5: aread(st+5, af)
    stamp("tail", 22)
    a(f"""s_mul_i32 s12, {sNT}, 5120
v_lshlrev_b32 v4, 4, {vL}
v_add_u32 v4, s12, v4
v_and_b32 v5, 15, {vL}
v_lshrrev_b32 v6, 4, {vL}
v_mul_u32_u24 v5, 2560, v5
v_lshl_add_u32 v5, v6, 3, v5
s_lshl_b32 s12, {sRB}, 2
s_add_u32 s12, s12, {sNT}
s_mul_i32 s12, s12, {16*2560}
s_mul_i32 s13, {sHG}, 160
s_add_u32 s12, s12, s13
s_cmp_eq_u32 {sKH}, 0
s_cbranch_scc1 L_red0""")
    for lab, send, keep in ((None, (0, 1, 2), (3, 4)), ("L_red0", (3, 4), (0, 1, 2))):
        if lab: a(f"{lab}:\ns_nop 3")
        for mt in send: a(f"ds_write_b128 v4, {vr(AC+4*mt,4)} offset:{1024*mt}")
        a("s_waitcnt lgkmcnt(0)\ns_barrier")
        for mt in keep: a(f"ds_read_b128 {vr(8+4*mt,4)}, v4 offset:{1024*mt}")
        for n, mt in enumerate(keep):
            a(f"s_waitcnt lgkmcnt({len(keep)-1-n})")
            for r in range(4): a(f"v_add_f32 v{AC+4*mt+r}, v{AC+4*mt+r}, v{8+4*mt+r}")
            cvt(32+2*mt, AC+4*mt, AC+4*mt+1); cvt(33+2*mt, AC+4*mt+2, AC+4*mt+3)
            a(f"buffer_store_dwordx2 {vr(32+2*mt,2)}, v5, {rA}, s12 offen offset:{32*mt}{OSC}")
        if PROF: a("s_waitcnt vmcnt(0)")
        stamp("tail", 23)
        prof_flush()
        a("s_endpgm")

def xpat(XG, n, first):
    a(f"v_lshrrev_b32 v24, 4, {vL}\nv_and_b32 v25, 15, {vL}\nv_add_u32 v24, {first}, v24\ns_mul_i32 s13, {sRB}, 81920")
    for y in range(n):
        a(f"v_add_u32 v26, {4*y}, v24\nv_xor_b32 v27, v26, v25\nv_mul_u32_u24 v26, 1280, v26\nv_lshlrev_b32 v27, 4, v27\nv_add3_u32 v{XG+y}, v26, v27, s13")
def issue_units(sK, ngrp):
    XG, WG_, WR = 32, 36, [40, 76]
    nw = 3*ngrp
    xpat(XG, 4, 0); wpat(WG_, 26)
    srd(44, pAX, 2048*1280); srd(48, pWQ, 640*1280)
    a(f"s_cmp_ge_u32 {sK}, {sKVQ}\ns_addc_u32 s14, {sK}, 0\ns_mul_i32 s15, s14, 20480\ns_lshl_b32 s14, s14, 12\ns_mul_i32 s57, {sK}, 9216\ns_mul_i32 s58, {sK}, 61440\ns_mov_b32 s12, {sU0}")
    a(f"v_lshlrev_b32 v24, 4, {vL}\nv_add_u32 v24, s57, v24\nv_add_u32 v28, {WA}, v24\nv_add_u32 v29, {WB}, v24")
    for n in range(1, 5):
        next_u("s12")
        a(f"s_lshl_b32 s13, s12, 8\ns_add_u32 s{79+n}, s13, s15\ns_mul_i32 s13, s12, 163840\ns_add_u32 s{83+n}, s13, s58")
    def ix(n):
        a(f"s_add_u32 m0, s14, {X0+16384*n}")
        for y in range(4):
            a(f"buffer_load_dwordx4 v{XG+y}, {rA}, s{79+n} offen lds")
            if y < 3: a("s_add_u32 m0, m0, 1024")
    def iw(n, slot):
        if slot is not None: a(f"s_add_u32 m0, s57, {slot}")
        for i in range(nw):
            if slot is not None: a(f"buffer_load_dwordx4 v{WG_+i%3}, {rB}, s{83+n} offen lds\ns_add_u32 m0, m0, 1024")
            else: a(f"buffer_load_dwordx4 {vr(WR[n-3]+4*i,4)}, v{WG_+i%3}, {rB}, s{83+n} offen")
            if i % 3 == 2 and i < nw-1: a(f"s_add_u32 s{83+n}, s{83+n}, 20480")
        stamp("h", 49+n)
    if sK == "s56":
        a(f"s_waitcnt vmcnt(0)"); arrive(S_KVL)
    wait_ge(S_ISS, 4, 0)
    ix(1); iw(1, WB)
    ix(2); ix(3)
    a(f"s_waitcnt vmcnt(8)"); arrive(S_LQ + 4)
    wait_ge(S_KVD, 2, 0)
    iw(2, WKV); iw(3, None)
    if "--s2late" in sys.argv:
        ix(4); a(f"s_waitcnt vmcnt({nw+4})"); arrive(S_LQ + 8); iw(4, None)
    else:
        a(f"s_waitcnt vmcnt({nw})"); arrive(S_LQ + 8); ix(4); iw(4, None)
    for n in (3, 4):
        wait_min4(S_QB, n-2, 0, 20)
        a(f"s_waitcnt vmcnt({4+nw if n == 3 else 0})")
        for i in range(nw): a(f"ds_write_b128 v{25+n}, {vr(WR[n-3]+4*i,4)} offset:{1024*i}")
        arrive(S_LQ + 4*n)
def issuers():
    a(f"L_iss:\ns_setprio 1\ns_and_b32 s56, {sW}, 1")
    issue_units("s56", 3)
    nonce()
    a("s_branch L_h_b1")
def epoch0():
    a(f"""s_lshl_b32 s58, {sXCD}, 11
s_add_u32 s58, s58, {FKV}
v_and_b32 v8, 31, {vL}
v_lshlrev_b32 v8, 6, v8
s_mul_i32 s57, {sXCD}, {8*TILE}
s_mul_i32 s14, s10, 11264
s_add_u32 s57, s57, s14
s_add_u32 s57, s57, {KVI}
s_sub_u32 s15, 11, s10""")
    wait_ge(S_LQ + 4*POLLAT, 3, 1)
    poll("v8", ["s58"], 18, 2)
    stamp("ld", 55)
    wait_min4(S_QB, 2, 0, 20)
    a(f"s_add_u32 m0, s14, {SLOTS[0]}\nL_e0:\nbuffer_load_dwordx4 v4, {rWS}, s57 offen{SC} lds\ns_add_u32 m0, m0, 1024\ns_add_u32 s57, s57, 1024\ns_sub_u32 s15, s15, 1\ns_cmp_lg_u32 s15, 0\ns_cbranch_scc1 L_e0\ns_waitcnt vmcnt(0)")
    arrive(S_FULL)
    stamp("ld", 56)
    a("s_branch L_h_b1")
def loader():
    a("L_loader:")
    if "--fix50" in sys.argv and "--first" not in sys.argv: a("s_memrealtime s[78:79]")
    a(f"v_mov_b32 v4, 0\nv_lshl_add_u32 v5, {vL}, 2, {vSY}\nds_write_b32 v5, v4\ns_waitcnt lgkmcnt(0)\ns_barrier\ns_setprio 3\nv_lshlrev_b32 v6, 4, {vL}\nv_lshlrev_b32 v7, 6, {vL}")
    a(f"s_mul_i32 s12, {sHG}, 160")
    for y in range(5):
        a(f"v_add_u32 v8, {64*y}, {vL}\nv_mul_u32_u24 v9, 52429, v8\nv_lshrrev_b32 v9, 19, v9\nv_mul_u32_u24 v16, 10, v9\nv_sub_u32 v16, v8, v16\nv_mul_u32_u24 v9, 1280, v9\nv_lshlrev_b32 v16, 4, v16\nv_add3_u32 v{10+y}, v9, v16, s12")
    nonce_load()
    srd(40, pWS, WSZ)
    a(f"s_mov_b32 s68, 2\nv_mov_b32 v15, 2")
    issue_units("s68", 2)
    nonce()
    srd(44, pWO, 640*1280)
    for e in range(8): a(f"s_mov_b32 s{80+e}, {SLOTS[e]}")
    sN, sE, sSL, sWOo, sWOl, sPASSL = "s12", "s13", "s14", "s15", "s56", "s57"
    a(f"s_mov_b32 {sN}, 0\ns_mov_b32 {sPASSL}, 0\ns_mov_b32 s68, 8")
    def kv_issue(slot):
        l = a.lab("ki")
        a(f"s_add_u32 {sE}, {sXCD}, {sN}\ns_and_b32 {sE}, {sE}, 7\ns_mul_i32 s58, {sE}, {8*TILE}\ns_add_u32 s58, s58, {KVI}\ns_mov_b32 m0, {slot}\ns_mov_b32 s59, 0\n{l}:")
        for y in range(3): a(f"buffer_load_dwordx4 v6, {rWS}, s58 offen{SC} lds\ns_add_u32 m0, m0, 1024\ns_add_u32 s58, s58, 1024")
        a(f"s_add_u32 s59, s59, 1\ns_cmp_lt_u32 s59, 7\ns_cbranch_scc1 {l}\ns_add_u32 {sN}, {sN}, 1")
    def full(n, cnt):
        a(f"s_waitcnt vmcnt({cnt})"); arrive(S_FULL, vSY, "v15"); stamp("ld", 2+n)
    for k in range(4): a(f"s_mov_b32 s{88+k}, {FKV+4096*k}")
    a(f"s_mov_b32 {sN}, 1")
    poll("v7", [f"s{88+k}" for k in range(4)], 40, 1)
    stamp("ld", 14)
    wait_min4(S_QB, 3, 0, 20)
    kv_issue(SLOTS[1])
    wait_min4(S_QB, 5, 0, 20)
    wait_ge(S_FULL, 2, 0)
    a(f"s_setprio {opt('lprio', 0)}")
    a("L_ld_p:\ns_mov_b32 m0, s12\ns_nop 0\ns_movrels_b32 s14, s80")
    kv_issue("s14")
    a("s_waitcnt vmcnt(21)"); arrive(S_FULL, vSY, "v15")
    if PROF: a(f"s_memrealtime s[64:65]\ns_waitcnt lgkmcnt(0)\ns_mov_b32 m0, {sN}\nv_writelane_b32 v167, s64, m0")
    a(f"s_cmp_lt_u32 {sN}, 6\ns_cbranch_scc1 L_ld_p")
    full(5, 0)
    for n in (6, 7):
        wait_min4(S_FREE, n-5, 12, 20)
        kv_issue(SLOTS[n]); full(n, 0)
    a("s_branch L_ld_wo\nL_ld_e:")
    a(f"s_sub_u32 s61, {sN}, 1")
    wait_min4(S_FREE, "s61", 4, 20)
    a(f"s_and_b32 m0, {sN}, 7\ns_nop 0\ns_movrels_b32 {sSL}, s80")
    kv_issue(sSL)
    a("s_waitcnt vmcnt(0)"); arrive(S_FULL, vSY, "v15")
    a(f"s_cmp_lt_u32 {sN}, s68\ns_cbranch_scc1 L_ld_e\nL_ld_wo:")
    a(f"s_sub_u32 s69, s68, 8")
    def wo_chunks(c0, n):
        l = a.lab("wo")
        a(f"s_mov_b32 m0, {WO+5120*c0}\ns_mov_b32 {sWOo}, {c0*32*1280}\ns_mov_b32 s59, 0\n{l}:")
        for y in range(5):
            a(f"buffer_load_dwordx4 v{10+y}, {rA}, {sWOo} offen lds\ns_add_u32 m0, m0, 1024")
        a(f"s_add_u32 {sWOo}, {sWOo}, {32*1280}\ns_add_u32 s59, s59, 1\ns_cmp_lt_u32 s59, {n}\ns_cbranch_scc1 {l}")
    for e, (c0, n) in ((2, (0, 4)), (3, (4, 4)), (4, (8, 4)), (5, (12, 4))):
        a(f"s_add_u32 s61, s69, {e+1}")
        wait_min4(S_FREE, "s61", 16, 20)
        wo_chunks(c0, n)
    wait_ge(S_HB, HB_RG_FREE, 16)
    wo_chunks(16, 4)
    stamp("ld", 11)
    a(f"s_cmp_lg_u32 {sPASSL}, 0\ns_cbranch_scc1 L_ld_b2\ns_cmp_lg_u32 s2, 0\ns_cbranch_scc1 L_ld_b2")
    a(f"s_mov_b32 s58, {XN}"); set_flag("s58", 18)
    a(f"L_ld_b2:\ns_lshl_b32 s58, {sRB}, 3\ns_add_u32 s69, s58, {sHG}\ns_lshl_b32 s69, s69, 6\ns_add_u32 s69, s69, {FO}\ns_lshl_b32 s61, {sPASSL}, 2\ns_add_u32 s61, s61, 4\ns_waitcnt vmcnt(0)")
    a(f"s_mul_i32 s62, {sPASSL}, 16\ns_add_u32 s62, s62, 8")
    wait_min4(S_FREE, "s62", 4, 20)
    a("s_setprio 3")
    wait_ost("s61")
    a(f"s_cmp_lg_u32 {sPASSL}, 0\ns_cbranch_scc1 L_ld_o\ns_cmp_lt_u32 s60, 0x100\ns_cbranch_scc1 L_ld_o")
    a(f"s_mov_b32 {sPASSL}, 1\ns_mov_b32 s68, 24\ns_branch L_ld_e\nL_ld_o:")
    set_flag("s69", 18)
    arrive(S_WOK)
    a(f"s_lshl_b32 s58, s58, 6\ns_add_u32 s58, s58, {FO}\nv_and_b32 v7, 7, {vL}\nv_lshlrev_b32 v7, 6, v7")
    poll("v7", ["s58"], 18, 0)
    stamp("ld", 12)
    a("s_barrier")
    if "--fix50" in sys.argv:
        a("s_barrier\nL_fx:\ns_memrealtime s[64:65]\ns_waitcnt lgkmcnt(0)\ns_sub_u32 s64, s64, s78\ns_cmp_lt_u32 s64, 5000\ns_cbranch_scc1 L_fx")
    prof_flush()
    a("s_endpgm")

def tload(dst, off, nq):
    for q in range(nq):
        o = off + 1024*q
        if q % 4 == 0: a(f"s_mov_b32 s59, {o}")
        a(f"buffer_load_dwordx4 {vr(dst+4*q,4)}, v4, {rC}, s59 offen offset:{1024*(q%4)}")
hb_count = [0]
def hbar(sleep=2):
    hb_count[0] += 4
    arrive(S_HB); wait_ge(S_HB, hb_count[0], max(sleep, BSL))
def cmul(dr, di, xr, xi, tc, ts, conj, tmp):
    a(f"v_mul_f32 v{tmp}, v{xi}, v{ts}\nv_mul_f32 v{tmp+1}, v{xr}, v{ts}")
    if not conj: a(f"v_fma_f32 v{dr}, v{xr}, v{tc}, v{tmp}\nv_fma_f32 v{di}, v{xi}, v{tc}, -v{tmp+1}")
    else: a(f"v_fma_f32 v{dr}, v{xr}, v{tc}, -v{tmp}\nv_fma_f32 v{di}, v{xi}, v{tc}, v{tmp+1}")
def kv_head():
    sP = "s10"
    a(f"""s_setprio 3
s_sub_u32 {sP}, {sW}, 4
v_lshlrev_b32 v4, 4, {vL}
v_lshrrev_b32 v5, 4, {vL}
v_and_b32 v6, 15, {vL}
s_and_b32 s56, {sHG}, 1
s_lshl2_add_u32 s12, {sKVQ}, {sP}
s_lshl_b32 s13, s12, 2
v_add_u32 v7, s13, v5
v_and_b32 v8, 15, v7
v_xor_b32 v9, v8, v6
v_mul_u32_u24 v7, 1280, v7
v_lshlrev_b32 v9, 4, v9
s_mul_i32 s13, {sRB}, 81920
v_add3_u32 v9, v7, v9, s13
s_lshl_b32 s12, s12, 10
s_lshl_b32 s13, {sP}, 10
s_add_u32 m0, s13, {WKV}
s_mov_b32 s14, {sU0}
s_mov_b32 s50, 25600
s_mov_b32 s51, 0x20000
s_mov_b32 s46, {2048*1280}
s_mov_b32 s47, 0x20000
s_cmp_eq_u32 s56, 0
s_waitcnt lgkmcnt(0)
s_cselect_b32 s48, s{pWK}, s{pWV}
s_cselect_b32 s49, s{pWK+1}, s{pWV+1}
s_mov_b32 s44, s{pAX}
s_mov_b32 s45, s{pAX+1}""")
    for y in range(7):
        if y == 6: a(f"s_cmp_lg_u32 {sP}, 0\ns_cbranch_scc1 L_h_nw")
        a(f"buffer_load_dwordx4 v4, {rB}, s13 offen lds")
        if y < 6: a("s_add_u32 m0, m0, 4096\ns_add_u32 s13, s13, 4096")
    a("L_h_nw:")
    for n in range(5):
        a(f"s_add_u32 m0, s12, {X0+16384*n}\ns_lshl_b32 s15, s14, 8\nbuffer_load_dwordx4 v9, {rA}, s15 offen lds")
        if n < 4: next_u("s14")
    stamp("h", 54)
    a("s_barrier")
    nonce_load()
    srd(40, pWS, WSZ)
    a(f"s_cmp_ge_u32 {sP}, 2\ns_cbranch_scc1 L_iss")
    XK, WK_, FB, AC = 8, 20, 32, 80
    a(f"s_lshl_b32 s12, {sKVQ}, 12\nv_lshlrev_b32 v12, 8, v6\nv_add_u32 v12, s12, v12")
    for k in range(4): a(f"v_or_b32 v13, {4*k}, v5\nv_xor_b32 v13, v13, v6\nv_lshl_add_u32 v{XK+k}, v13, 4, v12\nv_add_u32 v{26+k}, 65536, v{XK+k}")
    a(f"""v_bfe_u32 v12, {vL}, 2, 2
v_lshl_add_u32 v12, v5, 3, v12
v_mul_u32_u24 v12, 40, v12
v_and_b32 v13, 3, {vL}
v_lshlrev_b32 v13, 3, v13
s_cmp_eq_u32 {sP}, 0
s_cselect_b32 s12, -1, 0
s_cselect_b32 s13, 0, 32
s_add_u32 s13, s13, {WKV}
v_and_b32 v13, s12, v13
v_add3_u32 v13, v12, v13, s13
s_mov_b32 s14, {sU0}""")
    for n in range(5):
        a(f"s_mul_i32 s15, s14, 5120\nv_add_u32 v{WK_+n}, s15, v13")
        if n < 4: next_u("s14")
    for i in range(4): a(f"v_mov_b32 v{AC+i}, 0")
    a(f"""s_lshl_b32 s12, {sRB}, 1
s_lshr_b32 s13, {sHG}, 2
s_add_u32 s12, s12, s13
s_mul_i32 s12, s12, {TILE}
s_add_u32 s12, s12, {KVI}
s_and_b32 s13, {sKVQ}, 1
v_lshrrev_b32 v14, 1, v5
v_and_b32 v15, 1, v5
s_mov_b64 s[68:69], 0
v_mov_b32 v17, 0
v_mov_b32 v18, 0
s_cmp_lg_u32 s56, 0
s_cbranch_scc1 L_h_va
s_lshl_b32 s13, s13, 4
v_add_u32 v16, s13, v6
v_lshlrev_b32 v19, 4, v16
v_lshl_add_u32 v19, v14, 9, v19
v_lshl_add_u32 v19, v15, 3, v19
v_lshlrev_b32 v16, 3, v16
v_add_u32 v16, 1024, v16
s_cmp_eq_u32 {sP}, 0
s_cselect_b64 vcc, -1, 0
s_cselect_b64 s[62:63], -1, 0xffff
v_cndmask_b32 v16, v16, v19, vcc
s_branch L_h_ad
L_h_va:
s_mul_i32 s15, s13, 640
s_add_u32 s15, s15, 1280
v_lshlrev_b32 v16, 4, v6
v_lshl_add_u32 v16, v15, 3, v16
v_add_u32 v16, s15, v16
v_lshl_add_u32 v19, v14, 8, v16
v_lshl_add_u32 v16, v14, 6, v16
v_add_u32 v16, 512, v16
s_mov_b32 s62, 0x00ff00ff
s_cmp_eq_u32 s13, 0
s_cselect_b32 s62, s62, 0x000f000f
s_cmp_eq_u32 {sP}, 0
s_cselect_b64 vcc, -1, 0
s_cselect_b32 s62, -1, s62
s_mov_b32 s63, s62
v_cndmask_b32 v16, v16, v19, vcc
s_cbranch_scc1 L_h_ad
v_subrev_u32 v14, 4, v6
v_lshl_add_u32 v14, v14, 2, v5
v_lshlrev_b32 v15, 3, v14
v_add_u32 v15, 2560, v15
v_cmp_lt_u32 s[68:69], 3, v6
v_mov_b32 v19, 0x3f803f80
v_mov_b32 v12, 0x3f80
v_cmp_eq_u32 vcc, 0, v14
v_lshrrev_b32 v14, 1, v14
v_cndmask_b32 v16, v16, v15, s[68:69]
v_cndmask_b32 v17, v17, v19, vcc
v_cndmask_b32 v18, v18, v12, vcc
v_cmp_eq_u32 vcc, 1, v14
s_nop 1
v_cndmask_b32 v17, v17, v19, vcc
v_cndmask_b32 v18, v18, v19, vcc
L_h_ad:""")
    nonce()
    a("s_waitcnt vmcnt(0)")
    stamp("h", 1)
    arrive(S_KVL)
    wait_ge(S_KVL, 4, 0)
    def kvrd(st):
        n, k = st >> 2, st & 3; f = FB + 8*(st % 5)
        a(f"ds_read_b128 {vr(f,4)}, v{XK+k if n < 4 else 26+k} offset:{16384*(n%4)}")
        for jh in range(2): a(f"ds_read_b64_tr_b16 {vr(f+4+2*jh,2)}, v{WK_+n} offset:{(32*k+4*jh)*40}")
    for typ in range(2):
        if typ == 0: a("s_cmp_lg_u32 s56, 0\ns_cbranch_scc1 L_h_vtype")
        else: a("L_h_vtype:")
        for st in range(5): kvrd(st)
        for st in range(20):
            f = FB + 8*(st % 5)
            a(f"s_waitcnt lgkmcnt({12 if st < 15 else (3*(19-st) + (1 if st > 15 else 0))})")
            if typ == 0: mfma16(AC, f+4, f, AC)
            else: mfma16(AC, f, f+4, AC)
            if st < 15: kvrd(st+5)
            if st == 15: arrive(S_KVD)
        if typ == 0:
            c = math.log2(math.e)/math.sqrt(20.0)
            cb = struct.unpack("<I", struct.pack("<f", c))[0]
            for i in range(4): a(f"v_mul_f32 v{AC+i}, {hex(cb)}, v{AC+i}")
            cvt(14, AC, AC+1); cvt(15, AC+2, AC+3)
            a("s_branch L_h_kvst")
        else:
            cvt(14, AC, AC+1); cvt(15, AC+2, AC+3)
            a("v_cndmask_b32 v14, v14, v17, s[68:69]\nv_cndmask_b32 v15, v15, v18, s[68:69]")
    a(f"L_h_kvst:\ns_mov_b64 exec, s[62:63]\nbuffer_store_dwordx2 v[14:15], v16, {rWS}, s12 offen sc1\ns_mov_b64 exec, -1")
    a(f"s_lshl_b32 s12, {sRB}, 3\ns_add_u32 s12, s12, {sHG}\ns_lshl_b32 s12, s12, 6\ns_add_u32 s12, s12, {FKV}")
    stamp("h", 2)
    a(f"s_waitcnt vmcnt(0)\ns_cmp_eq_u32 {sP}, 0\ns_cbranch_scc1 L_h_kvf")
    arrive(S_KVS)
    a("s_branch L_h_kvd\nL_h_kvf:")
    wait_ge(S_KVS, 1, 0)
    set_flag("s12", 16)
    a("L_h_kvd:")
    stamp("h", 3)
    epoch0()
def cmul2(re, im, tc, ts, conj, t0):
    if "--pk" not in sys.argv:
        for k in range(2): cmul(re+k, im+k, re+k, im+k, tc+k, ts+k, conj, t0+2*k)
        return
    ng = " neg_lo:[0,0,1] neg_hi:[0,0,1]"
    a(f"v_pk_mul_f32 {vr(t0,2)}, {vr(im,2)}, {vr(ts,2)}\nv_pk_mul_f32 {vr(t0+2,2)}, {vr(re,2)}, {vr(ts,2)}")
    a(f"v_pk_fma_f32 {vr(re,2)}, {vr(re,2)}, {vr(tc,2)}, {vr(t0,2)}{ng if conj else ''}\nv_pk_fma_f32 {vr(im,2)}, {vr(im,2)}, {vr(tc,2)}, {vr(t0+2,2)}{'' if conj else ng}")
HIMASK = opt("himask", 0x7f)
def hi(k):
    if HIMASK >> k & 1: a(f"s_setprio {HPRIO}")
def lo(): a("s_setprio 0")
def spectral():
    sP, sS0, sI0 = "s10", "s11", "s71"
    WRAW = 132
    vZ, vIMG, vLIN, vZ3, vTG, vWL, vTL, vUG, vZW, vOUT, vPL = 148, 149, 150, 151, 154, 157, 158, 159, 162, 165, "v7"
    sTS, sWG, sTG_, sUS, sUL, sOUT, sWS = 77, 78, 80, 81, 82, 86, 88
    a(f"""L_h_b1:
s_setprio 0
s_lshl_b32 {sS0}, {sXCD}, 5
s_add_u32 {sS0}, {sS0}, {sI}
s_getpc_b64 s[52:53]
L_pc:
s_add_u32 s52, s52, L_tables-L_pc
s_addc_u32 s53, s53, 0
s_mov_b32 s54, {TB.BLOB.nbytes}
s_mov_b32 s55, 0x20000
v_lshlrev_b32 v4, 4, {vL}
v_lshrrev_b32 v5, 4, {vL}
v_and_b32 v6, 15, {vL}
v_lshl_add_u32 v8, v5, 6, v6
v_lshlrev_b32 {vPL}, 6, {vL}
v_lshrrev_b32 v9, 5, {vL}
v_and_b32 v10, 31, {vL}
v_cmp_lt_u32 s[66:67], 31, {vL}
s_mul_i32 {sI0}, {sP}, 3
s_cmp_eq_u32 {sP}, 3
s_cselect_b32 {sI0}, 8, {sI0}
s_mul_i32 s14, {sRB}, 10
s_mul_i32 s15, {sHG}, 321
s_add_u32 s14, s14, s15
s_and_b32 s70, s14, 1
s_add_u32 s70, s70, {sI0}
s_lshr_b32 s14, s14, 1
s_lshl_b32 s{sWG}, s14, 2
s_mul_i32 s14, {sP}, {64*8*642}
s_add_u32 s{sWG}, s{sWG}, s14
s_add_u32 s{sWG+1}, s{sWG}, {32*8*642}
s_mul_i32 s14, {sP}, 3072
s_mul_i32 s{sTS}, {sS0}, {TP}
s_add_u32 s{sTS}, s{sTS}, s14
s_add_u32 s{sTS}, s{sTS}, {TBUF}
s_lshl_b32 s{sUS}, {sHG}, 5
s_add_u32 s{sUS}, s{sUS}, {sRB}
s_mul_i32 s{sUS}, s{sUS}, {UP}
s_add_u32 s{sUS}, s{sUS}, s14
s_add_u32 s{sUS}, s{sUS}, {UBUF}
s_add_u32 s{sWS}, s14, {RG}
v_add_u32 v{vLIN}, s{sWS}, v4
s_mul_i32 s14, {sHG}, 1408
s_mul_i32 s15, {sRB}, 40
s_add_u32 s14, s14, s15
s_mul_i32 s15, {sP}, {64*TP}
s_add_u32 s14, s14, s15
s_add_u32 s{sTG_}, s14, {TBUF}
s_mul_i32 s{sUL}, {sS0}, 48
s_add_u32 s{sUL}, s{sUL}, {UBUF}
s_add_u32 s{sUL+1}, s{sUL}, {32*UP}
s_add_u32 s{sUL+2}, s{sUL}, {64*UP}
s_add_u32 s{sUL+3}, s{sUL}, {96*UP}
s_lshl_b32 s12, {sP}, 8
s_add_u32 s12, s12, {sS0}
s_mul_i32 s{sOUT}, s12, 2560
s_add_u32 s{sOUT}, s{sOUT}, 1280
s_add_u32 s{sOUT+1}, s{sOUT}, {1024*2560}
v_mul_u32_u24 v{vOUT}, 40, v10
v_lshl_add_u32 v{vOUT}, v9, 3, v{vOUT}
v_mul_u32_u24 v{vZ}, 320, v9
v_add_u32 v{vZ}, v{vZ}, v10
s_lshl_b32 s14, {sP}, 2
s_add_u32 s14, s14, {ZS}
v_lshl_add_u32 v{vZ}, v{vZ}, 4, s14
s_lshl_b32 s14, {sP}, 5
v_add_u32 v11, s14, v10
v_mul_u32_u24 v{vIMG}, {4*1408}, v9
v_lshl_add_u32 v{vIMG}, v11, 2, v{vIMG}
v_add_u32 v{vIMG}, {RG}, v{vIMG}
v_lshlrev_b32 v{vWL}, 5, v8
s_lshl_b32 s14, s70, 1
s_add_u32 s14, s14, {RG}
v_add_u32 v{vWL}, s14, v{vWL}
v_mul_u32_u24 v{vTL}, 48, v8
s_lshl_b32 s14, {sI0}, 2
s_add_u32 s14, s14, {RG}
v_add_u32 v{vTL}, s14, v{vTL}
v_mul_u32_u24 v12, {128*UP}, v9
v_mov_b32 v13, 640
v_mov_b32 v14, 0""")
    for q in range(3):
        a(f"""v_add_u32 v15, {64*q}, {vL}
v_mul_u32_u24 v16, 43691, v15
v_lshrrev_b32 v16, 17, v16
v_mul_u32_u24 v17, 3, v16
v_sub_u32 v17, v15, v17
v_mul_u32_u24 v16, {TP}, v16
v_lshl_add_u32 v{vTG+q}, v17, 4, v16
v_add_u32 v15, {128*q}, v11
v_min_u32 v16, 320, v15
v_mul_u32_u24 v17, 52429, v16
v_lshrrev_b32 v17, 19, v17
v_min_u32 v17, 31, v17
v_mul_u32_u24 v17, {UP-40}, v17
v_lshl_add_u32 v16, v16, 2, v12
v_add_u32 v{vUG+q}, v16, v17
v_sub_u32 v16, 640, v15
v_cmp_lt_u32 vcc, 320, v15
v_cndmask_b32 v16, v15, v16, s[66:67]
v_cndmask_b32 v17, v16, v13, vcc
v_cmp_eq_u32 vcc, 640, v16
v_lshlrev_b32 v{vZW+q}, 4, v17
v_cndmask_b32 v16, v16, v14, vcc
v_lshlrev_b32 v{vZ3+q}, 4, v16""")
    C32, S32, N32, TW, F20, M3 = 8, 16, 24, 32, 56, 76
    AD, RE, IM, BO, TMP = 80, 96, 112, 80, 128
    srd(44, pBX, 2048*1280)
    a(f"""s_mul_i32 s12, s12, 1280
v_add_u32 v128, s12, v4
v_add_u32 v129, 1024, v128
v_add_u32 v130, {1024*1280-256}, v128
v_cmp_lt_u32 vcc, 15, {vL}
v_add_u32 v131, 1024, v130
s_mul_i32 s13, {sP}, 2560
s_add_u32 s13, s13, {BX}
v_cndmask_b32 v129, v129, v130, vcc
v_bfe_u32 v130, {vL}, 2, 2
v_lshl_add_u32 v130, v9, 2, v130
v_mul_u32_u24 v130, 40, v130
v_and_b32 v15, 3, {vL}
v_lshlrev_b32 v15, 3, v15
v_bfe_u32 v16, {vL}, 4, 1
v_cmp_eq_u32 vcc, 1, v16
v_mov_b32 v16, 32
v_lshrrev_b32 v5, 1, {vL}
v_cndmask_b32 v15, v15, v16, vcc
v_add3_u32 v130, v130, v15, s13
v_mul_u32_u24 v5, {8*642}, v5
v_and_b32 v6, 1, {vL}
v_lshl_add_u32 v5, v6, 4, v5
s_lshl_b32 s14, {sP}, 11
s_add_u32 s14, s14, {RG}
v_add_u32 v6, s14, v4""")
    wait_ge(S_FULL, 2*B1AT, 3)
    if "--lateb" in sys.argv: wait_min4(S_FREE, 8, 32, 12)
    stamp("h", 4)
    a(f"s_mov_b32 m0, s13\ns_nop 0\nbuffer_load_dwordx4 v128, {rA}, 0 offen lds\ns_add_u32 m0, m0, 1024\ns_nop 0\nbuffer_load_dwordx4 v129, {rA}, 0 offen lds")
    a(f"s_add_u32 m0, m0, 1024\ns_mov_b32 exec_hi, 0\nbuffer_load_dwordx4 v131, {rA}, 0 offen lds\ns_mov_b64 exec, -1")
    tload(C32, TB.OFF["C32_0"], 18)
    srd(44, pWR, 2048*642); srd(48, pWI, 2048*642)
    a("s_waitcnt vmcnt(18)")
    for k in range(4):
        for jh in range(2): a(f"ds_read_b64_tr_b16 {vr(AD+4*k+2*jh,2)}, v130 offset:{1280*(k>>1) + 640*(k&1) + 320*jh}")
    a("s_waitcnt vmcnt(0) lgkmcnt(0)")
    stamp("h", 30)
    for z, rr in enumerate((rA, rB)):
        for y in range(2): a(f"buffer_load_dwordx4 {vr(WRAW+8*z+4*y,4)}, v5, {rr}, s{sWG+y} offen")
    hi(0)
    for k, (tr, ti) in enumerate(((C32, N32), (C32+4, N32+4), (S32, C32), (S32+4, C32+4))):
        mfma32(RE, AD+4*k, tr, RE if k else None); mfma32(IM, AD+4*k, ti, IM if k else None)
    for r in range(0, 12, 2): cmul2(RE+r, IM+r, TW+r, TW+12+r, False, TMP)
    for i in range(4): cvt(BO+i, RE+2*i, RE+2*i+1)
    for i in range(4): cvt(BO+4+i, IM+2*i, IM+2*i+1)
    for i in range(2): cvt(BO+8+i, RE+8+2*i, RE+9+2*i)
    for i in range(2): cvt(BO+10+i, IM+8+2*i, IM+9+2*i)
    for k, (tr, ti) in enumerate(((F20, F20+8), (F20+4, F20), (F20+12, F20+16))):
        mfma32(RE, tr, BO+4*k, RE if k else None); mfma32(IM, ti, BO+4*k, IM if k else None)
    for r in range(10):
        cvt(TW+r, RE+r, IM+r); a(f"ds_write_b32 v{vZ}, v{TW+r} offset:{512*r}")
    lo()
    stamp("h", 31)
    hbar()
    stamp("h", 32)
    for q in range(3): a(f"ds_read_b128 {vr(BO+4*q,4)}, v{vZ3+q} offset:{ZS}")
    DD = [RE, IM, TW]
    hi(1)
    for q in range(3):
        a(f"s_waitcnt lgkmcnt({2-q})"); mfma32(DD[q], M3, BO+4*q, None)
    for q in range(3):
        if q == 2: a(f"s_cmp_eq_u32 {sP}, 3\ns_cbranch_scc1 L_b1_sk")
        for t in range(4):
            cvt(BO+4*q+t, DD[q]+2*t, DD[q]+2*t+1)
            a(f"ds_write_b32 v{vIMG}, v{BO+4*q+t} offset:{512*q+1408*t}")
    a("L_b1_sk:")
    lo()
    hbar()
    for q in range(3): a(f"ds_read_b128 {vr(BO+4*q,4)}, v{vLIN} offset:{1024*q}")
    for q in range(3):
        if q == 2: a(f"s_cmp_eq_u32 {sP}, 3\ns_cbranch_scc1 L_b1_s2")
        a(f"s_waitcnt lgkmcnt({2-q})\nbuffer_store_dwordx4 {vr(BO+4*q,4)}, v4, {rWS}, s{sTS} offen offset:{1024*q} sc1")
    a("L_b1_s2:")
    stamp("h", 33)
    G_, TF, TI, H_, F16, TM = 8, 16, 24, 32, 40, 48
    WF, AT, R2, OUTR = 60, 84, 96, 120
    for i in range(24): a(f"v_mov_b32 v{WF+i}, 0")
    a("s_waitcnt vmcnt(0) lgkmcnt(0)")
    stamp("h", 5)
    hbar()
    a(f"s_cmp_lg_u32 {sP}, 0\ns_cbranch_scc1 L_b2_nf\ns_lshl_b32 s58, s2, 6\ns_add_u32 s58, s58, {FB1}")
    set_flag("s58", 52)
    a(f"L_b2_nf:")
    for z in range(2):
        for y in range(2): a(f"ds_write_b128 v6, {vr(WRAW+8*z+4*y,4)} offset:{8192*z+1024*y}")
    a(f"s_lshl_b32 s59, {sHG}, 13\ns_add_u32 s59, s59, {TB.OFF['B2_0']}")
    for q in range(8):
        if q == 4: a("s_add_u32 s59, s59, 4096")
        a(f"buffer_load_dwordx4 {vr(G_+4*q,4)}, v4, {rC}, s59 offen offset:{1024*(q%4)}")
    tload(F16, TB.OFF["F16"], 2)
    hbar()
    stamp("h", 34)
    for t in range(3):
        for z in range(2):
            for r in range(4): a(f"ds_read_u16_d16_hi v{WF+8*t+4*z+r}, v{vWL} offset:{8192*z+512*r+2*t}")
    a(f"s_cmp_lg_u32 {sP}, 0\ns_cbranch_scc1 L_b2_np")
    for k in range(4): a(f"s_mov_b32 s{72+k}, {FB1+4096*k}")
    poll(vPL, ["s72", "s73", "s74", "s75"], 52, 4)
    stamp("h", 41)
    a("L_b2_np:")
    hbar(4)
    stamp("h", 6)
    a(f"s_mov_b32 m0, s{sWS}")
    for y in range(3):
        a(f"buffer_load_dwordx4 v{vTG+y}, {rWS}, s{sTG_} offen{SC} lds")
        if y < 2: a("s_add_u32 m0, m0, 1024")
    stamp("h", 35)
    a("s_waitcnt vmcnt(0)")
    hbar()
    for t in range(3):
        for r in range(4): a(f"ds_read_b32 v{AT+4*t+r}, v{vTL} offset:{768*r+4*t}")
    arrive(S_HB)
    a("s_waitcnt lgkmcnt(1)")
    hi(2)
    stamp("h", 36)
    def tw_stage(tc, ts, conj, first_im):
        for t in range(3):
            re, im = R2+8*t, R2+8*t+4
            for r in (0, 2): cmul2(re+r, im+r, tc(t)+r, ts(t)+r, conj, TM)
            x, y = (im, re) if first_im else (re, im)
            cvt(AT+4*t, x, x+1); cvt(AT+4*t+1, x+2, x+3); cvt(AT+4*t+2, y, y+1); cvt(AT+4*t+3, y+2, y+3)
    for t in range(3): mfma16(R2+8*t, AT+4*t, G_, None); mfma16(R2+8*t+4, AT+4*t, G_+4, None)
    tw_stage(lambda t: TF, lambda t: TF+4, False, False)
    for t in range(3): mfma16(R2+8*t, F16, AT+4*t, None); mfma16(R2+8*t+4, F16+4, AT+4*t, None)
    tw_stage(lambda t: WF+8*t, lambda t: WF+8*t+4, True, True)
    for t in range(3): mfma16(R2+8*t, AT+4*t, F16+4, None); mfma16(R2+8*t+4, AT+4*t, F16, None)
    tw_stage(lambda t: TI, lambda t: TI+4, True, False)
    for t in range(3): mfma16(R2+8*t, H_, AT+4*t, None); mfma16(R2+8*t+4, H_+4, AT+4*t, None)
    hb_count[0] += 4; wait_ge(S_HB, hb_count[0], 1)
    hi(3)
    for t in range(3):
        for r in range(4):
            cvt(OUTR+4*t+r, R2+8*t+r, R2+8*t+4+r)
            a(f"ds_write_b32 v{vTL}, v{OUTR+4*t+r} offset:{768*r+4*t}")
    lo()
    hbar()
    for q in range(3): a(f"ds_read_b128 {vr(OUTR+4*q,4)}, v{vLIN} offset:{1024*q}")
    for q in range(3): a(f"s_waitcnt lgkmcnt({2-q})\nbuffer_store_dwordx4 {vr(OUTR+4*q,4)}, v4, {rWS}, s{sUS} offen offset:{1024*q} sc1")
    global HB_RG_FREE
    HB_RG_FREE = hb_count[0] + 4
    stamp("h", 37)
    M3I, I20, TW3 = 32, 36, 56
    BO, DD, AD, RE, IM, AX = 88, [100, 116, 132], 88, 100, 116, 132
    a("s_waitcnt vmcnt(0)")
    stamp("h", 7)
    hbar()
    a(f"s_cmp_lg_u32 {sP}, 0\ns_cbranch_scc1 L_b3_nf\ns_lshl_b32 s58, s2, 6\ns_add_u32 s58, s58, {FB2}")
    set_flag("s58", 100)
    a("L_b3_nf:")
    tload(C32, TB.OFF["C32_0"], 6); tload(M3I, TB.OFF["M3I"], 14)
    srd(44, pOUT, 2048*2560)
    a(f"s_cmp_lg_u32 {sP}, 0\ns_cbranch_scc1 L_b3_np")
    for k in range(4): a(f"s_mov_b32 s{72+k}, {FB2+4096*k}")
    poll(vPL, ["s72", "s73", "s74", "s75"], 104, 4)
    stamp("h", 42)
    a("L_b3_np:")
    hbar(4)
    stamp("h", 8)
    for q in range(3):
        for t in range(4): a(f"buffer_load_dword v{BO+4*q+t}, v{vUG+q}, {rWS}, s{sUL+t} offen{SC}")
    stamp("h", 38)
    if "--nogate3" not in sys.argv: wait_min4(S_FREE, 8, 2, 100)
    hi(4)
    for q in range(3):
        a(f"s_waitcnt vmcnt({8-4*q})"); mfma32(DD[q], M3I, BO+4*q, None)
    stamp("h", 39)
    a(f"s_mov_b32 s62, 1\ns_mov_b32 s63, 1\ns_cmp_eq_u32 {sP}, 0\ns_cbranch_scc1 L_b3_f0\ns_cmp_eq_u32 {sP}, 2\ns_cbranch_scc1 L_b3_f2\ns_branch L_b3_fd")
    for lab, q in (("L_b3_f0", 0), ("L_b3_f2", 2)):
        a(f"{lab}:\ns_nop 11")
        for r in range(8):
            d = DD[q]+r
            a(f"v_mul_f32 v3, 0.5, v{d}\nv_mul_f32 v7, 0.5, v{d}\nv_permlane32_swap_b32 v3, v7\nv_add_f32 v3, v3, v7\nv_cndmask_b32 v{d}, v{d}, v3, s[62:63]")
        if q == 0: a("s_branch L_b3_fd")
    a("L_b3_fd:\ns_nop 8")
    for q in range(3):
        for t in range(4): cvt(BO+4*q+t, DD[q]+2*t, DD[q]+2*t+1)
        a(f"ds_write_b128 v{vZW+q}, {vr(BO+4*q,4)} offset:{ZS}")
    hbar()
    stamp("h", 40)
    for r in range(10): a(f"ds_read_b32 v{AD+r}, v{vZ} offset:{512*r}")
    a("s_waitcnt lgkmcnt(0)")
    mfma32(RE, AD, I20, None); mfma32(IM, AD, I20+8, None)
    mfma32(RE, AD+4, I20+4, RE); mfma32(IM, AD+4, I20+12, IM)
    mfma32h(RE, AD+8, I20+16, RE); mfma32h(IM, AD+8, I20+18, IM)
    for r in range(0, 16, 2): cmul2(RE+r, IM+r, TW3+r, TW3+16+r, True, 88)
    for i in range(8): cvt(AX+i, RE+2*i, RE+2*i+1)
    for i in range(8): cvt(AX+8+i, IM+2*i, IM+2*i+1)
    for k, (tr, ti) in enumerate(((C32, S32), (C32+4, S32+4), (N32, C32), (N32+4, C32+4))):
        mfma32(RE, AX+4*k, tr, RE if k else None); mfma32(IM, AX+4*k, ti, IM if k else None)
    for z, D in enumerate((RE, IM)):
        for G in range(3):
            o = 88 + 6*z + 2*G
            cvt(o, D+4*G, D+4*G+1); cvt(o+1, D+4*G+2, D+4*G+3)
            if G == 2: a("s_mov_b32 exec_hi, 0")
            a(f"buffer_store_dwordx2 {vr(o,2)}, v{vOUT}, {rA}, s{sOUT+z} offen offset:{16*G}{OSC}")
            if G == 2: a("s_mov_b64 exec, -1")
    stamp("h", 10)
    a("s_branch L_tail")

prologue()
kv_head()
issuers()
att_head()
att_main()
tail()
spectral()
loader()
a("L_exit:\ns_endpgm")
if "--nobc" in sys.argv or "--nobm" in sys.argv or "--nobv" in sys.argv:
    i0 = a.l.index("L_h_b1:"); i1 = a.l.index("L_loader:")
    kill = []
    if "--nobc" in sys.argv or "--nobm" in sys.argv: kill += ["v_mfma"]
    if "--nobc" in sys.argv or "--nobv" in sys.argv: kill += ["v_fma_f32", "v_mul_f32", "v_cvt_pk"]
    a.l = a.l[:i0] + [x for x in a.l[i0:i1] if not x.startswith(tuple(kill))] + a.l[i1:]
body = a.finish()
hdr = f"""; MQA attention (heads 32 x 20) + output projection, and a 2-D real-FFT filter, in one launch.
; @launch grid=(256,1,1) block=(576,1,1) lds={LDS_BYTES}
.amdgcn_target "amdgcn-amd-amdhsa--gfx950"
.text
.globl {NAME}_kernel
.p2align 8
.type {NAME}_kernel,@function
{NAME}_kernel:
"""
tab = ".p2align 8\n.type L_tables,@object\nL_tables:\n"
B = TB.BLOB
for i in range(0, len(B), 8): tab += ".long " + ",".join(f"0x{x:x}" for x in B[i:i+8]) + "\n"
tab += f".size L_tables, {B.nbytes}\n"
ftr = f""".section .rodata,"a"
.p2align 6
.amdhsa_kernel {NAME}_kernel
  .amdhsa_next_free_vgpr 168
  .amdhsa_next_free_sgpr 96
  .amdhsa_accum_offset 168
  .amdhsa_group_segment_fixed_size 0
  .amdhsa_kernarg_size 88
  .amdhsa_user_sgpr_count 2
  .amdhsa_user_sgpr_kernarg_segment_ptr 1
  .amdhsa_system_sgpr_workgroup_id_x 1
.end_amdhsa_kernel
"""
open(OUT, "w").write(hdr + body + tab + ftr)
print("wrote", OUT, len(hdr + body + tab + ftr), "bytes;", len(a.l), "lines")
```

```python
import sys, math, struct
from asmlib import Asm
import tables as TB

NAME = "concat_heads__grouped_kv_mqa__spectral_gfnet__prompt"
PROF = "--prof" in sys.argv
SC = "" if ("--inv" in sys.argv or "--plain" in sys.argv) else " sc1"
OUT = [a for a in sys.argv[1:] if not a.startswith("--")]
OUT = OUT[0] if OUT else f"cdna_kernels/{NAME}.s"

def opt(name, d):
    x = [v for v in sys.argv if v.startswith(f"--{name}=")]
    return int(x[0].split("=")[1], 0) if x else d
X0, WA, WB, WKV = 0, 81920, 106496, 137728
SLOT_A, SLOT_B = 0, 141824
ZS, WO, BX, SY = 21504, 32768, 124928, 163328
LDS_BYTES = 163840
S_KVL, S_KVD, S_FULL, S_HB, S_BAD, S_ISS, S_LQ, S_KVS, S_QB, S_FREE, S_OST, S_WOK = 0, 4, 12, 20, 24, 28, 32, 52, 64, 80, 56, 60
SLOTS = [SLOT_A, SLOT_B] + [WO + 21504*k for k in range(4)] + [SLOT_A, SLOT_B]
TILE = 2688
RG = 118784
TP, UP = 11392, 12416
XN, FKV, FB1, FB2, FO = 0, 0x1000, 0x10000, 0x14000, 0x18000
KVI, OBUF, TBUF, UBUF, WSZ = 0x20000, 0x80000, 0x300000, 0x600000, 0xA00000
PROFOFF = 0xA00000
if PROF: WSZ = 0xB00000
sW, sXCD, sI, sRB, sHG, sU0, sKVQ = "s3", "s4", "s5", "s6", "s7", "s8", "s9"
pAX, pWQ, pWK, pWV, pWO, pBX, pWR, pWI, pOUT, pDBG, pWS = 16, 18, 20, 22, 24, 26, 28, 30, 32, 34, 36
NON = "s[38:39]"
rWS, rA, rB, rC = "s[40:43]", "s[44:47]", "s[48:51]", "s[52:55]"
vL, vSY, vONE, vT = "v0", "v1", "v2", "v3"
POLLAT = int([x for x in sys.argv if x.startswith("--pollat=")][0][9:]) if any(x.startswith("--pollat=") for x in sys.argv) else 3
B1AT = int([x for x in sys.argv if x.startswith("--b1at=")][0][7:]) if any(x.startswith("--b1at=") for x in sys.argv) else 3
BSL, HPRIO = opt("bsleep", 0), opt("hprio", 2)
OSC = {0: "", 1: " sc1", 2: " nt", 3: " sc0 sc1", 4: " sc1 nt"}[opt("osc", 0)]
a = Asm()
def vr(b, n): return f"v[{b}:{b+n-1}]" if n > 1 else f"v{b}"
def srd(base, ptr, size):
    a(f"s_mov_b32 s{base}, s{ptr}\ns_mov_b32 s{base+1}, s{ptr+1}\ns_mov_b32 s{base+2}, {hex(size)}\ns_mov_b32 s{base+3}, 0x20000")
def arrive(off, va=vSY, val=vONE):
    a(f"s_mov_b64 exec, 1\nds_add_u32 {va}, {val} offset:{off}\ns_mov_b64 exec, -1")
def wait_min4(off, tgt, sleep, vq):
    l = a.lab("w"); d = a.lab("wd")
    a(f"{l}:\nds_read_b128 {vr(vq,4)}, {vSY} offset:{off}\ns_waitcnt lgkmcnt(0)\nv_min3_u32 v{vq}, v{vq}, v{vq+1}, v{vq+2}\nv_min_u32 v{vq}, v{vq}, v{vq+3}\nv_readfirstlane_b32 s60, v{vq}\ns_cmp_ge_u32 s60, {tgt}\ns_cbranch_scc1 {d}\n{spin(d)}s_sleep {sleep}\ns_branch {l}\n{d}:")
def spin(d):
    return f"s_cmp_eq_u32 s76, 0\ns_cbranch_scc1 {d}\ns_sub_u32 s76, s76, 1\n"
def wait_ge(off, tgt, sleep=1, va=vSY):
    l = a.lab("w"); d = a.lab("wd")
    a(f"{l}:\nds_read_b32 {vT}, {va} offset:{off}\ns_waitcnt lgkmcnt(0)\nv_readfirstlane_b32 s60, {vT}\ns_cmp_ge_u32 s60, {tgt}\ns_cbranch_scc1 {d}\n{spin(d)}s_sleep {sleep}\ns_branch {l}\n{d}:")
def wait_ost(tgt):
    l = a.lab("w"); d = a.lab("wd")
    a(f"{l}:\nds_read_b32 {vT}, {vSY} offset:{S_OST}\ns_waitcnt lgkmcnt(0)\nv_readfirstlane_b32 s60, {vT}\ns_and_b32 s59, s60, 0xff\ns_cmp_ge_u32 s59, {tgt}\ns_cbranch_scc1 {d}\n{spin(d)}s_branch {l}\n{d}:")
def nonce_load():
    a(f"s_load_dwordx2 s[38:39], s[{pWS}:{pWS+1}], {XN}")
def nonce():
    a("s_waitcnt lgkmcnt(0)")
    a("s_mul_i32 s38, s38, 0x9E3779B1\ns_add_u32 s38, s38, 0x7F4A7C15\ns_mul_i32 s39, s39, 0x2C9277B5\ns_add_u32 s39, s39, 0x5851F42D")
def set_flag(soff, v0_):
    a(f"v_mov_b32 v{v0_}, s38\nv_mov_b32 v{v0_+1}, s39\nv_mov_b32 v{v0_+2}, 0\ns_mov_b64 exec, 1")
    a(f"buffer_store_dwordx2 {vr(v0_,2)}, v{v0_+2}, {rWS}, {soff} offen sc1\ns_mov_b64 exec, -1")
def poll(vaddr, soffs, vd, sleep):
    l = a.lab("p"); d = a.lab("pd")
    a(f"{l}:")
    for k, so in enumerate(soffs): a(f"buffer_load_dwordx2 {vr(vd+2*k,2)}, {vaddr}, {rWS}, {so} offen sc1")
    a("s_waitcnt vmcnt(0)")
    a(f"v_cmp_ne_u64 vcc, {NON}, {vr(vd,2)}")
    for k in range(1, len(soffs)):
        a(f"v_cmp_ne_u64 s[62:63], {NON}, {vr(vd+2*k,2)}\ns_or_b64 vcc, vcc, s[62:63]")
    a(f"s_cbranch_vccz {d}\n{spin(d)}s_sleep {sleep}\ns_branch {l}\n{d}:")
def acquire():
    if "--inv" in sys.argv: a("buffer_inv sc1\ns_waitcnt vmcnt(0)")
prof_n = {}
FIXAT = opt("fixat", -1)
def fix_end():
    if FIXAT < 0: return
    l = a.lab("fx"); d = a.lab("fd")
    a(f"s_cmp_ge_u32 {sW}, 4\ns_cbranch_scc1 {d}\n{l}:\ns_memrealtime s[64:65]\ns_waitcnt lgkmcnt(0)\ns_sub_u32 s64, s64, s92\ns_cmp_lt_u32 s64, 4000\ns_cbranch_scc1 {l}\n{d}:")
def stamp(role, idx):
    if idx == FIXAT and role in ("att", "tail", "all"): a("s_memrealtime s[92:93]\ns_waitcnt lgkmcnt(0)")
    if not PROF: return
    a(f"s_memrealtime s[64:65]\ns_waitcnt lgkmcnt(0)\nv_writelane_b32 v167, s64, {idx}")
def cstamp(idx):
    if not PROF: return
    a(f"s_memtime s[64:65]\ns_waitcnt lgkmcnt(0)\nv_writelane_b32 v167, s64, {idx}")
def prof_flush():
    if not PROF: return
    if "--dbgout" in sys.argv:
        l = a.lab("nd")
        a(f"s_or_b32 s64, s2, {sW}\ns_cmp_lg_u32 s64, 0\ns_cbranch_scc1 {l}")
        srd(48, pDBG, 256)
        a("v_readlane_b32 s64, v167, 0\nv_readlane_b32 s65, v167, 20\nv_writelane_b32 v167, s65, 6\nv_readlane_b32 s65, v167, 21\nv_writelane_b32 v167, s65, 7\nv_readlane_b32 s65, v167, 22\nv_writelane_b32 v167, s65, 8\nv_readlane_b32 s65, v167, 23\nv_writelane_b32 v167, s65, 9")
        a(f"v_subrev_u32 v167, s64, v167\nv_lshlrev_b32 v166, 2, {vL}\nbuffer_store_dword v167, v166, {rB}, 0 offen\ns_waitcnt vmcnt(0)\n{l}:")
        return
    a("v_writelane_b32 v167, s76, 63")
    a(f"s_mul_i32 s64, s2, 9\ns_add_u32 s64, s64, {sW}\ns_lshl_b32 s64, s64, 8\ns_add_u32 s64, s64, {PROFOFF}\nv_lshlrev_b32 v166, 2, {vL}")
    a(f"buffer_store_dword v167, v166, {rWS}, s64 offen\ns_waitcnt vmcnt(0)")
def mfma32(d, A, B, C): a(f"v_mfma_f32_32x32x16_bf16 {vr(d,16)}, {vr(A,4)}, {vr(B,4)}, {vr(C,16) if C is not None else 0}")
def mfma32h(d, A, B, C): a(f"v_mfma_f32_32x32x8_bf16 {vr(d,16)}, {vr(A,2)}, {vr(B,2)}, {vr(C,16) if C is not None else 0}")
def mfma16(d, A, B, C): a(f"v_mfma_f32_16x16x32_bf16 {vr(d,4)}, {vr(A,4)}, {vr(B,4)}, {vr(C,4) if C is not None else 0}")
def cvt(d, x, y): a(f"v_cvt_pk_bf16_f32 v{d}, v{x}, v{y}")
def next_u(s):
    a(f"s_add_u32 {s}, {s}, 1\ns_cmp_eq_u32 {s}, 5\ns_cselect_b32 {s}, 0, {s}")

def prologue():
    if "--first" in sys.argv: a("s_memrealtime s[78:79]")
    a(f"""s_cmp_ge_u32 s2, 256
s_cbranch_scc1 L_exit
s_load_dwordx16 s[16:31], s[0:1], 0
s_load_dwordx4 s[32:35], s[0:1], 64
s_load_dwordx2 s[36:37], s[0:1], 80
v_lshrrev_b32 v1, 6, v0
v_and_b32 v0, 63, v0
v_readfirstlane_b32 {sW}, v1
s_and_b32 {sXCD}, s2, 7
s_lshr_b32 {sI}, s2, 3
s_lshr_b32 {sRB}, {sI}, 3
s_lshl2_add_u32 {sRB}, {sXCD}, {sRB}
s_and_b32 {sHG}, {sI}, 7
s_lshr_b32 {sKVQ}, {sHG}, 1
s_and_b32 {sU0}, {sRB}, 3
s_add_u32 {sU0}, {sU0}, {sHG}
s_cmp_ge_u32 {sU0}, 5
s_cselect_b32 s10, 5, 0
s_sub_u32 {sU0}, {sU0}, s10
s_cmp_ge_u32 {sU0}, 5
s_cselect_b32 s10, 5, 0
s_sub_u32 {sU0}, {sU0}, s10
v_mov_b32 {vSY}, {SY}
v_mov_b32 {vONE}, 1
s_mov_b32 s76, 0x40000""")
    if PROF: a("v_mov_b32 v167, 0")
    stamp("all", 0)
    a(f"s_cmp_ge_u32 {sW}, 8\ns_cbranch_scc1 L_loader\ns_cmp_lt_u32 {sW}, 4\ns_cbranch_scc1 L_att")

QA1, QA2, QB1, QB2 = 4, 8, 10, 14
OA, OB_, SA, SB, PA, PB = 16, 32, 48, 64, 80, 96
KB1 = [112, 116]; KB2 = [120, 122]; VB = [124, 132]
aK1, aK2, aV0, aV1, vIDX, vSW = 140, 141, 142, 143, 144, "v145"
def wpat(WG_, t0):
    a(f"s_mul_i32 s12, {sHG}, 160\ns_and_b32 s12, s12, 0xffffffc0")
    for y in range(3):
        a(f"v_add_u32 v{t0}, {64*y}, {vL}\nv_mul_u32_u24 v{t0+1}, 43691, v{t0}\nv_lshrrev_b32 v{t0+1}, 19, v{t0+1}\nv_mul_u32_u24 v{t0+2}, 12, v{t0+1}\nv_sub_u32 v{t0+2}, v{t0}, v{t0+2}\nv_mul_u32_u24 v{t0+1}, 1280, v{t0+1}\nv_lshlrev_b32 v{t0+2}, 4, v{t0+2}\nv_add3_u32 v{WG_+y}, v{t0+1}, v{t0+2}, s12")
def att_head():
    XG, WG_, XA, WAa = 148, 149, 154, 162
    AC0, AC1 = 16, 32
    FB = [48, 60, 72, 84]
    sQH, sHP = "s10", "s11"
    a(f"L_att:\ns_and_b32 {sQH}, {sW}, 1\ns_lshr_b32 {sHP}, {sW}, 1\ns_lshl_b32 s12, {sW}, 2\nv_add_u32 {vSW}, s12, {vSY}")
    if "--pf" in sys.argv:
        a(f"""s_getpc_b64 s[52:53]
L_pc0:
s_sub_u32 s52, s52, L_pc0-{NAME}_kernel
s_subb_u32 s53, s53, 0
s_mov_b32 s54, L_tables-{NAME}_kernel+{TB.BLOB.nbytes}
s_mov_b32 s55, 0x20000
s_lshl_b32 s13, {sI}, 2
s_add_u32 s13, s13, {sW}
s_and_b32 s13, s13, 15
s_lshl_b32 s13, s13, 13
v_lshlrev_b32 v4, 7, {vL}
buffer_load_dword v152, v4, {rC}, s13 offen""")
    a(f"v_lshrrev_b32 v4, 4, {vL}\nv_and_b32 v5, 15, {vL}\nv_add_u32 v4, s12, v4\nv_xor_b32 v5, v4, v5\nv_mul_u32_u24 v4, 1280, v4\nv_lshlrev_b32 v5, 4, v5\ns_mul_i32 s13, {sRB}, 81920\nv_add3_u32 v{XG}, v4, v5, s13")
    wpat(WG_, 4)
    a("s_waitcnt lgkmcnt(0)")
    srd(44, pAX, 2048*1280); srd(48, pWQ, 640*1280); srd(40, pWS, WSZ)
    if "--touch" in sys.argv:
        a(f"s_mov_b64 exec, 1\nbuffer_load_dword v152, v{WG_}, {rB}, 0 offen\nv_mov_b32 v153, {FKV-64}\nbuffer_load_dword v152, v153, {rWS}, 0 offen\ns_mov_b64 exec, -1")
    a(f"s_mov_b32 s12, {sU0}\ns_lshl_b32 s56, {sW}, 10\ns_mul_i32 s57, {sW}, 6144\ns_mul_i32 s58, {sW}, 40960")
    a("s_barrier")
    for n in range(1):
        a("s_lshl_b32 s13, s12, 8")
        for qd in range(4):
            sk = a.lab("sk")
            a(f"s_cmp_eq_u32 {sKVQ}, {qd}\ns_cbranch_scc1 {sk}\ns_add_u32 m0, s56, {X0+16384*n+4096*qd}\ns_add_u32 s14, s13, {20480*qd}\nbuffer_load_dwordx4 v{XG}, {rA}, s14 offen lds\n{sk}:")
        a(f"s_mul_i32 s13, s12, 163840\ns_add_u32 s13, s13, s58\ns_add_u32 s14, s13, 20480\ns_add_u32 m0, s57, {[WA, WB][n]}")
        for y in range(6):
            a(f"buffer_load_dwordx4 v{WG_+y%3}, {rB}, {'s13' if y < 3 else 's14'} offen lds")
            if y < 5: a("s_add_u32 m0, m0, 1024")
    arrive(S_ISS)
    stamp("att", 15)
    a(f"v_and_b32 v4, 31, {vL}\nv_lshrrev_b32 v5, 5, {vL}\nv_and_b32 v6, 15, {vL}\ns_lshl_b32 s14, {sQH}, 13\nv_lshlrev_b32 v4, 8, v4\nv_add_u32 v4, s14, v4")
    for k in range(8):
        a(f"v_or_b32 v7, {2*k}, v5\nv_xor_b32 v7, v7, v6\nv_lshl_add_u32 v{XA+k}, v7, 4, v4")
    a(f"""v_bfe_u32 v4, {vL}, 4, 1
v_cmp_eq_u32 vcc, 0, v4
v_mov_b32 v7, 0x38282020
v_mov_b32 v8, 0x18081000
v_and_b32 v9, 3, {vL}
v_lshlrev_b32 v9, 3, v9
v_cndmask_b32 v7, v7, v8, vcc
v_bfe_u32 v7, v7, v9, 8
v_mov_b32 v8, 0x48484030
v_bfe_u32 v8, v8, v9, 8
v_bfe_u32 v9, {vL}, 2, 2
v_lshl_add_u32 v9, v5, 3, v9
v_mul_u32_u24 v9, 192, v9
s_and_b32 s14, {sHG}, 1
s_lshl_b32 s14, s14, 5
s_mul_i32 s15, {sHP}, 80
s_add_u32 s14, s14, s15
s_add_u32 s14, s14, {WA}
v_add3_u32 v{WAa}, v9, v7, s14
v_add3_u32 v{WAa+1}, v9, v8, s14""")
    for i in range(32): a(f"v_mov_b32 v{AC0+i}, 0")
    sN = "s12"
    def rdl(k):
        f = FB[k % 4]; kk = k % 8
        l = [f"ds_read_b128 {vr(f,4)}, v{XA+kk}"]
        for t in range(2):
            for jh in range(2):
                l.append(f"ds_read_b64_tr_b16 {vr(f+4+4*t+2*jh,2)}, v{WAa+t} offset:{(16*kk+4*jh)*192}")
        l.append(f"v_add_u32 v{XA+kk}, 16384, v{XA+kk}")
        return l
    def rd(k):
        for x in rdl(k): a(x)
    for n, d in enumerate((WB-WA, WKV-WB, WA-WKV, WB-WA, 0)): a(f"s_mov_b32 s{80+n}, {d & 0xffffffff}")
    a(f"s_mov_b32 {sN}, 0\nv_mov_b32 v148, {SY+4}\ns_mov_b32 s61, 3\ns_waitcnt vmcnt(0)")
    arrive(S_LQ)
    wait_ge(S_KVL, 4, 0)
    stamp("att", 1)
    wait_ge(S_LQ, 4, 0)
    stamp("att", 10)
    rd(0); rd(1)
    a("L_qloop:")
    for k in range(8):
        if k == 6:
            a(f"s_mov_b32 m0, {sN}\ns_waitcnt lgkmcnt(0)\nv_readfirstlane_b32 s60, {vT}\ns_movrels_b32 s14, s80")
            arrive(S_QB, vSW)
            a(f"v_add_u32 v{WAa}, s14, v{WAa}\nv_add_u32 v{WAa+1}, s14, v{WAa+1}\ns_cmp_lt_u32 s60, s61\ns_cbranch_scc1 L_qwait\nL_qgo:")
            if PROF: a(f"s_add_u32 s13, {sN}, 11\ns_memrealtime s[64:65]\ns_memtime s[62:63]\ns_waitcnt lgkmcnt(0)\ns_mov_b32 m0, s13\nv_writelane_b32 v167, s64, m0\ns_add_u32 m0, m0, 30\ns_nop 0\nv_writelane_b32 v167, s62, m0")
        elif k != 7: a("s_waitcnt lgkmcnt(5)")
        f = FB[k % 4]; r = rdl(k+2)
        mfma32(AC0, f+4, f, AC0); a(r[0]); a(r[1]); a(r[5])
        mfma32(AC1, f+8, f, AC1); a(r[2]); a(r[3]); a(r[4])
        if k == 5: a(f"ds_read_b32 {vT}, v148 offset:{S_LQ}")
    a(f"v_add_u32 v148, 4, v148\ns_add_u32 {sN}, {sN}, 1\ns_cmp_eq_u32 {sN}, 4\ns_cselect_b32 s61, 0, s61\ns_cmp_lt_u32 {sN}, 5\ns_cbranch_scc1 L_qloop\ns_waitcnt lgkmcnt(0)")
    stamp("att", 2)
    a(f"""v_lshlrev_b32 v{aK1}, 4, {vL}
v_add_u32 v{aK1}, {SLOT_A}, v{aK1}
v_and_b32 v150, 31, {vL}
v_lshrrev_b32 v151, 5, {vL}
v_lshlrev_b32 v152, 3, v150
v_add_u32 v152, {SLOT_A+1024}, v152
v_mov_b32 v153, {SLOT_A+2560}
v_cmp_lt_u32 s[66:67], 31, {vL}
v_lshlrev_b32 v154, 4, v150
v_lshl_add_u32 v155, v151, 8, v154
v_cndmask_b32 v{aK2}, v152, v153, s[66:67]
v_lshl_add_u32 v156, v151, 6, v154
v_add_u32 v156, 256, v156
v_cmp_lt_u32 vcc, 15, v150
v_and_b32 v157, 27, v150
v_cndmask_b32 v155, v155, v156, vcc
v_add_u32 v155, {SLOT_A+1280}, v155
v_add_u32 v156, 640, v155
v_cmp_eq_u32 vcc, 24, v157
v_mov_b32 v158, {SLOT_A+2560+32}
v_mov_b32 v159, {SLOT_A+2560+16}
v_cndmask_b32 v158, v158, v159, vcc
v_cmp_lt_u32 vcc, 19, v150
v_mov_b32 v{vIDX}, 0xdddd
v_mov_b32 v157, 0
v_cndmask_b32 v{aV0}, v155, v158, vcc
v_cndmask_b32 v{aV1}, v156, v158, vcc""")
    for i in range(4): cvt(QA1+i, AC0+2*i, AC0+2*i+1)
    for i in range(2): cvt(QA2+i, AC0+8+2*i, AC0+9+2*i)
    for i in range(2): cvt(QB1+i, AC0+12+2*i, AC0+13+2*i)
    for i in range(2): cvt(QB1+2+i, AC1+2*i, AC1+1+2*i)
    for i in range(2): cvt(QB2+i, AC1+4+2*i, AC1+5+2*i)
    for r in (QA2, QA2+1, QB2, QB2+1): a(f"v_cndmask_b32 v{r}, v{r}, v157, s[66:67]")

sPB, sEP, sTG, sDK, sDV, sPASS = "s12", "s13", "s14", "s15", "s56", "s57"
def smf(O, V, P): a(f"v_smfmac_f32_32x32x32_bf16 {vr(O,16)}, {vr(V,4)}, {vr(P,8)}, v{vIDX}")
def exps(P, S, i0):
    for i in range(i0, i0+4): a(f"v_exp_f32 v{P+i}, v{S+i}")
DELTA = [(SLOTS[(e+1) % 8] - SLOTS[e]) & 0xffffffff for e in range(8)]
def att_main():
    for e in range(9): a(f"s_mov_b32 s{80+e}, {DELTA[e % 8]}")
    a(f"s_mov_b32 {sPB}, 0\ns_mov_b32 {sPASS}, 0\nL_pass:")
    a(f"s_add_u32 s61, {sPB}, 2")
    for i in range(32): a(f"v_mov_b32 v{OA+i}, 0")
    for i in range(8): a(f"v_mov_b32 v{PB+8+i}, 0")
    for i in range(4): a(f"v_mov_b32 v{VB[1]+4+i}, 0")
    wait_ge(S_FULL, "s61", 0)
    stamp("att", 3); cstamp(24)
    for j in range(2):
        a(f"ds_read_b128 {vr(KB1[j],4)}, v{aK1} offset:{j*TILE}\nds_read_b64 {vr(KB2[j],2)}, v{aK2} offset:{j*TILE}")
    a(f"ds_read_b128 {vr(VB[0],4)}, v{aV0}\nds_read_b128 {vr(VB[0]+4,4)}, v{aV1}")
    a(f"s_mov_b32 {sEP}, 0\ns_mov_b32 {sDK}, {DELTA[0]}\ns_waitcnt lgkmcnt(4)")
    mfma32(SA, KB1[0], QA1, None); mfma32h(SA, KB2[0], QA2, SA)
    a(f"s_add_u32 {sTG}, {sPB}, 4\ns_nop 7\ns_nop 1\n.p2align 3\nL_epoch:")
    for j in range(8):
        kb, vb = j & 1, j & 1
        jk = (j+2) % 8; jv = (j+1) % 8
        mfma32(SB, KB1[kb], QB1, None); exps(PA, SA, 0)
        mfma32h(SB, KB2[kb], QB2, SB); exps(PA, SA, 4)
        smf(OB_, VB[1-vb]+4, PB+8); exps(PA, SA, 8)
        a("s_waitcnt lgkmcnt(0)")
        if j == 6:
            a(f"v_readfirstlane_b32 s60, {vT}\nv_add_u32 v{aK1}, {sDK}, v{aK1}\nv_add_u32 v{aK2}, {sDK}, v{aK2}\ns_cmp_lt_u32 s60, {sTG}\ns_cbranch_scc1 L_notfull\nL_full:")
        smf(OA, VB[vb], PA); a(f"ds_read_b128 {vr(KB1[kb],4)}, v{aK1} offset:{jk*TILE}"); exps(PA, SA, 12)
        mfma32(SA, KB1[1-kb], QA1, None); a(f"ds_read_b64 {vr(KB2[kb],2)}, v{aK2} offset:{jk*TILE}"); exps(PB, SB, 0)
        if j == 7: a(f"v_add_u32 v{aV0}, {sDK}, v{aV0}\nv_add_u32 v{aV1}, {sDK}, v{aV1}")
        mfma32h(SA, KB2[1-kb], QA2, SA); a(f"ds_read_b128 {vr(VB[1-vb],4)}, v{aV0} offset:{jv*TILE}"); exps(PB, SB, 4)
        smf(OA, VB[vb]+4, PA+8); a(f"ds_read_b128 {vr(VB[1-vb]+4,4)}, v{aV1} offset:{jv*TILE}")
        if j == 6: arrive(S_FREE, vSW)
        if j == 5: a(f"ds_read_b32 {vT}, {vSY} offset:{S_FULL}")
        exps(PB, SB, 8)
        if j == 7:
            a(f"s_add_u32 {sEP}, {sEP}, 1\ns_mov_b32 m0, {sEP}\ns_cmp_lt_u32 {sEP}, 7\ns_cselect_b32 s59, 2, 0\ns_add_u32 {sTG}, {sTG}, s59\ns_movrels_b32 {sDK}, s80\ns_cmp_lt_u32 {sEP}, 8")
        smf(OB_, VB[vb], PB); exps(PB, SB, 12)
    a("s_cbranch_scc1 L_epoch")
    a("s_nop 1")
    smf(OB_, VB[1]+4, PB+8)
    a("s_waitcnt lgkmcnt(0)")
    stamp("att", 4); cstamp(25)
    a(f"s_add_u32 {sPB}, {sPB}, 16")
    a(f"s_lshl_b32 s58, {sRB}, 1\ns_add_u32 s58, s58, s10\ns_lshl_b32 s58, s58, 3\ns_add_u32 s58, s58, {sHG}\ns_mul_i32 s58, s58, 5120\ns_add_u32 s58, s58, {OBUF}")
    a(f"s_lshl_b32 s59, s11, 11\ns_add_u32 s59, s59, s58\ns_lshl_b32 s61, s11, 9\ns_add_u32 s58, s58, s61\ns_add_u32 s58, s58, 4096")
    a(f"v_lshlrev_b32 v146, 4, {vL}\ns_mov_b32 s68, 0x21800000\ns_mov_b32 s69, 0x5d800000")
    a(f"v_rcp_f32 v147, v{OA+12}\nv_cmp_nle_f32 vcc, s68, v{OA+12}\nv_cmp_nge_f32 s[62:63], s69, v{OA+12}\ns_or_b64 s[70:71], vcc, s[62:63]")
    for i in range(12): a(f"v_mul_f32 v{OA+i}, v{OA+i}, v147")
    for i in range(4): cvt(SA+i, OA+2*i, OA+2*i+1)
    for i in range(2): cvt(SA+8+i, OA+8+2*i, OA+9+2*i)
    a(f"buffer_store_dwordx4 {vr(SA,4)}, v146, {rWS}, s59 offen sc1")
    a(f"v_rcp_f32 v147, v{OB_+12}\nv_cmp_nle_f32 vcc, s68, v{OB_+12}\nv_cmp_nge_f32 s[62:63], s69, v{OB_+12}\ns_or_b64 s[70:71], s[70:71], vcc\ns_or_b64 s[70:71], s[70:71], s[62:63]")
    for i in range(12): a(f"v_mul_f32 v{OB_+i}, v{OB_+i}, v147")
    for i in range(4): cvt(SA+4+i, OB_+2*i, OB_+2*i+1)
    for i in range(2): cvt(SA+10+i, OB_+8+2*i, OB_+9+2*i)
    a(f"buffer_store_dwordx4 {vr(SA+4,4)}, v146, {rWS}, s59 offen offset:1024 sc1")
    a(f"s_mov_b32 exec_hi, 0\nbuffer_store_dwordx4 {vr(SA+8,4)}, v146, {rWS}, s58 offen sc1\ns_mov_b64 exec, -1")
    a(f"s_cmp_eq_u64 s[70:71], 0\ns_cselect_b32 s58, 1, 0x101\nv_mov_b32 v147, s58\ns_lshl_b32 s61, {sPASS}, 2\ns_add_u32 s61, s61, 4\ns_waitcnt vmcnt(0)")
    a(f"s_mov_b64 exec, 1\nds_add_u32 {vSY}, v147 offset:{S_OST}\ns_mov_b64 exec, -1")
    stamp("att", 5)
    wait_ost("s61")
    a(f"s_cmp_lg_u32 {sPASS}, 0\ns_cbranch_scc1 L_tail\ns_cmp_lt_u32 s60, 0x100\ns_cbranch_scc1 L_tail")
    MA, MB = 146, 147
    a(f"s_mov_b32 {sPASS}, 1\nv_mov_b32 v{MA}, 0xff800000\nv_mov_b32 v{MB}, 0xff800000\ns_mov_b32 {sEP}, 0\nL_mx_e:\ns_mov_b32 m0, {sEP}\ns_nop 0\ns_movrels_b32 {sDK}, s80\ns_sub_u32 {sDK}, {sDK}, {8*TILE}")
    a(f"s_lshl1_add_u32 s61, {sEP}, {sPB}\ns_add_u32 s61, s61, 2")
    wait_ge(S_FULL, "s61")
    a(f"s_mov_b32 {sTG}, 0\nL_mx_t:")
    a(f"ds_read_b128 {vr(KB1[0],4)}, v{aK1}\nds_read_b64 {vr(KB2[0],2)}, v{aK2}\ns_waitcnt lgkmcnt(0)")
    mfma32(SA, KB1[0], QA1, None); mfma32h(SA, KB2[0], QA2, SA)
    mfma32(SB, KB1[0], QB1, None); mfma32h(SB, KB2[0], QB2, SB)
    for i in range(8): a(f"v_max3_f32 v{MA}, v{MA}, v{SA+2*i}, v{SA+2*i+1}")
    for i in range(8): a(f"v_max3_f32 v{MB}, v{MB}, v{SB+2*i}, v{SB+2*i+1}")
    a(f"v_add_u32 v{aK1}, {TILE}, v{aK1}\nv_add_u32 v{aK2}, {TILE}, v{aK2}\ns_add_u32 {sTG}, {sTG}, 1\ns_cmp_lt_u32 {sTG}, 8\ns_cbranch_scc1 L_mx_t")
    arrive(S_FREE, vSW)
    a(f"v_add_u32 v{aK1}, {sDK}, v{aK1}\nv_add_u32 v{aK2}, {sDK}, v{aK2}")
    a(f"s_add_u32 {sEP}, {sEP}, 1\ns_cmp_lt_u32 {sEP}, 8\ns_cbranch_scc1 L_mx_e\ns_add_u32 {sPB}, {sPB}, 16")
    for M, Q2 in ((MA, QA2), (MB, QB2)):
        a(f"""v_mov_b32 v148, v{M}
v_permlane32_swap_b32 v{M}, v148
v_max_f32 v{M}, v{M}, v148
v_sub_f32 v{M}, 0, v{M}
v_and_b32 v148, 0xffff0000, v{M}
v_sub_f32 v{M}, v{M}, v148
v_and_b32 v149, 0xffff0000, v{M}
v_sub_f32 v{M}, v{M}, v149
v_lshrrev_b32 v148, 16, v148
v_or_b32 v148, v148, v149
v_lshrrev_b32 v149, 16, v{M}
v_cndmask_b32 v{Q2}, v{Q2}, v148, s[66:67]
v_cndmask_b32 v{Q2+1}, v{Q2+1}, v149, s[66:67]""")
    a("s_branch L_pass")
    a("L_qwait:"); wait_ge(S_LQ, "s61", 0, "v148"); a("s_branch L_qgo")
    a("L_notfull:"); wait_ge(S_FULL, sTG, 0); a("s_branch L_full")

def tail():
    AF, BF, AC, vA0, vA1, vO0, vO1 = 4, 104, 144, 164, 165, 100+64+2, 3
    a("L_tail:\ns_setprio 0")
    sNT, sKH = "s10", "s11"
    a(f"s_and_b32 {sNT}, {sW}, 3\ns_lshr_b32 {sKH}, {sW}, 2")
    a(f"""v_lshrrev_b32 v144, 4, {vL}
v_bfe_u32 v145, {vL}, 2, 2
v_and_b32 v146, 3, {vL}
v_lshrrev_b32 v147, 1, v144
v_and_b32 v148, 1, v144
v_mul_u32_u24 v149, 20, v147
v_lshl_add_u32 v149, v148, 2, v149
v_add_u32 v149, v149, v145
v_mul_u32_u24 v149, 160, v149
v_mul_u32_u24 v150, 80, v147
v_mul_u32_u24 v151, 40, v148
v_add3_u32 v150, v150, v151, v145
v_mul_u32_u24 v150, 160, v150
s_mul_i32 s12, {sKH}, {320*160}
s_add_u32 s12, s12, {WO}
v_lshlrev_b32 v146, 3, v146
v_add3_u32 v{vA0}, v149, v146, s12
s_add_u32 s12, s12, {16*160}
v_add3_u32 v{vA1}, v150, v146, s12""")
    def aread(st, dst):
        for mt in range(5):
            for jh in range(2):
                if st < 8: ad, off = vA0, ((st >> 1)*80 + (st & 1)*40 + 8*jh)*160 + 32*mt
                else: ad, off = vA1, ((st-8)*160 + 20*jh)*160 + 32*mt
                a(f"ds_read_b64_tr_b16 {vr(dst+4*mt+2*jh,2)}, v{ad} offset:{off}")
    wait_ge(S_WOK, 1, 1)
    for st in range(5): aread(st, AF+20*st)
    a(f"""v_and_b32 v145, 15, {vL}
v_lshlrev_b32 v145, 4, v145
v_lshl_add_u32 v145, v148, 9, v145
v_lshl_add_u32 v166, v147, 10, v145
v_mul_u32_u24 v147, 5120, v147
v_add_u32 {vT}, v147, v145
s_lshl_b32 s12, {sRB}, 1
s_lshr_b32 s13, {sNT}, 1
s_add_u32 s12, s12, s13
s_lshl_b32 s12, s12, 1
s_add_u32 s12, s12, {sKH}
s_mul_i32 s12, s12, 20480
s_and_b32 s13, {sNT}, 1
s_lshl_b32 s13, s13, 8
s_add_u32 s12, s12, s13
s_add_u32 s12, s12, {OBUF}""")
    for x in range(1, 4): a(f"s_add_u32 s{12+x}, s12, {5120*x}")
    a("s_add_u32 s58, s12, 4096\ns_add_u32 s59, s14, 4096")
    srd(44, pOUT, 2048*2560)
    for i in range(20): a(f"v_mov_b32 v{AC+i}, 0")
    a("s_waitcnt lgkmcnt(0)")
    stamp("tail", 20)
    a("s_barrier")
    stamp("tail", 21)
    for st in range(8): a(f"buffer_load_dwordx4 {vr(BF+4*st,4)}, v166, {rWS}, s{12+(st>>1)} offen offset:{2048*(st&1)} sc1")
    for st in range(2): a(f"buffer_load_dwordx4 {vr(BF+32+4*st,4)}, {vT}, {rWS}, s{58+st} offen sc1")
    for st in range(10):
        a(f"s_waitcnt vmcnt({9-st})")
        if st >= 5: a(f"s_waitcnt lgkmcnt({min(15, 10*(9-st))})")
        af = AF + 20*(st % 5)
        for mt in range(5): mfma16(AC+4*mt, af+4*mt, BF+4*st, AC+4*mt)
        if st < 5: aread(st+5, af)
    stamp("tail", 22)
    a(f"""s_mul_i32 s12, {sNT}, 5120
v_lshlrev_b32 v4, 4, {vL}
v_add_u32 v4, s12, v4
v_and_b32 v5, 15, {vL}
v_lshrrev_b32 v6, 4, {vL}
v_mul_u32_u24 v5, 2560, v5
v_lshl_add_u32 v5, v6, 3, v5
s_lshl_b32 s12, {sRB}, 2
s_add_u32 s12, s12, {sNT}
s_mul_i32 s12, s12, {16*2560}
s_mul_i32 s13, {sHG}, 160
s_add_u32 s12, s12, s13
s_cmp_eq_u32 {sKH}, 0
s_cbranch_scc1 L_red0""")
    for lab, send, keep in ((None, (0, 1, 2), (3, 4)), ("L_red0", (3, 4), (0, 1, 2))):
        if lab: a(f"{lab}:\ns_nop 3")
        for mt in send: a(f"ds_write_b128 v4, {vr(AC+4*mt,4)} offset:{1024*mt}")
        a("s_waitcnt lgkmcnt(0)\ns_barrier")
        for mt in keep: a(f"ds_read_b128 {vr(8+4*mt,4)}, v4 offset:{1024*mt}")
        for n, mt in enumerate(keep):
            a(f"s_waitcnt lgkmcnt({len(keep)-1-n})")
            for r in range(4): a(f"v_add_f32 v{AC+4*mt+r}, v{AC+4*mt+r}, v{8+4*mt+r}")
            cvt(32+2*mt, AC+4*mt, AC+4*mt+1); cvt(33+2*mt, AC+4*mt+2, AC+4*mt+3)
            a(f"buffer_store_dwordx2 {vr(32+2*mt,2)}, v5, {rA}, s12 offen offset:{32*mt}{OSC}")
        if PROF: a("s_waitcnt vmcnt(0)")
        stamp("tail", 23)
        fix_end()
        prof_flush()
        a("s_endpgm")

def xpat(XG, n, first):
    a(f"v_lshrrev_b32 v24, 4, {vL}\nv_and_b32 v25, 15, {vL}\nv_add_u32 v24, {first}, v24\ns_mul_i32 s13, {sRB}, 81920")
    for y in range(n):
        a(f"v_add_u32 v26, {4*y}, v24\nv_xor_b32 v27, v26, v25\nv_mul_u32_u24 v26, 1280, v26\nv_lshlrev_b32 v27, 4, v27\nv_add3_u32 v{XG+y}, v26, v27, s13")
def issue_units(sK, ngrp):
    XG, WG_, WR = 32, 36, [40, 76]
    nw = 3*ngrp
    xpat(XG, 4, 0); wpat(WG_, 26)
    srd(44, pAX, 2048*1280); srd(48, pWQ, 640*1280)
    a(f"s_cmp_ge_u32 {sK}, {sKVQ}\ns_addc_u32 s14, {sK}, 0\ns_mul_i32 s15, s14, 20480\ns_lshl_b32 s14, s14, 12\ns_mul_i32 s57, {sK}, 9216\ns_mul_i32 s58, {sK}, 61440\ns_mov_b32 s12, {sU0}")
    a(f"v_lshlrev_b32 v24, 4, {vL}\nv_add_u32 v24, s57, v24\nv_add_u32 v28, {WA}, v24\nv_add_u32 v29, {WB}, v24")
    for n in range(1, 5):
        next_u("s12")
        a(f"s_lshl_b32 s13, s12, 8\ns_add_u32 s{79+n}, s13, s15\ns_mul_i32 s13, s12, 163840\ns_add_u32 s{83+n}, s13, s58")
    def ix(n):
        a(f"s_add_u32 m0, s14, {X0+16384*n}")
        for y in range(4):
            a(f"buffer_load_dwordx4 v{XG+y}, {rA}, s{79+n} offen lds")
            if y < 3: a("s_add_u32 m0, m0, 1024")
    def iw(n, slot):
        if slot is not None: a(f"s_add_u32 m0, s57, {slot}")
        for i in range(nw):
            if slot is not None: a(f"buffer_load_dwordx4 v{WG_+i%3}, {rB}, s{83+n} offen lds\ns_add_u32 m0, m0, 1024")
            else: a(f"buffer_load_dwordx4 {vr(WR[n-3]+4*i,4)}, v{WG_+i%3}, {rB}, s{83+n} offen")
            if i % 3 == 2 and i < nw-1: a(f"s_add_u32 s{83+n}, s{83+n}, 20480")
        stamp("h", 49+n)
    if sK == "s56":
        a(f"s_waitcnt vmcnt(0)"); arrive(S_KVL)
    wait_ge(S_ISS, 4, 0)
    ix(1); iw(1, WB)
    ix(2); ix(3)
    a(f"s_waitcnt vmcnt(8)"); arrive(S_LQ + 4)
    wait_ge(S_KVD, 2, 0)
    iw(2, WKV); iw(3, None)
    if "--s2early" not in sys.argv:
        ix(4); a(f"s_waitcnt vmcnt({nw+4})"); arrive(S_LQ + 8); iw(4, None)
    else:
        a(f"s_waitcnt vmcnt({nw})"); arrive(S_LQ + 8); ix(4); iw(4, None)
    for n in (3, 4):
        wait_min4(S_QB, n-2, 0, 20)
        a(f"s_waitcnt vmcnt({4+nw if n == 3 else 0})")
        for i in range(nw): a(f"ds_write_b128 v{25+n}, {vr(WR[n-3]+4*i,4)} offset:{1024*i}")
        arrive(S_LQ + 4*n)
def issuers():
    a(f"L_iss:\ns_setprio 1\ns_and_b32 s56, {sW}, 1")
    issue_units("s56", 3)
    nonce()
    a("s_branch L_h_b1")
def epoch0():
    a(f"""s_lshl_b32 s58, {sXCD}, 11
s_add_u32 s58, s58, {FKV}
v_and_b32 v8, 31, {vL}
v_lshlrev_b32 v8, 6, v8
s_mul_i32 s57, {sXCD}, {8*TILE}
s_mul_i32 s14, s10, 11264
s_add_u32 s57, s57, s14
s_add_u32 s57, s57, {KVI}
s_sub_u32 s15, 11, s10""")
    wait_ge(S_LQ + 4*POLLAT, 3, 1)
    poll("v8", ["s58"], 18, 2)
    stamp("ld", 55)
    wait_min4(S_QB, 2, 0, 20)
    a(f"s_add_u32 m0, s14, {SLOTS[0]}\nL_e0:\nbuffer_load_dwordx4 v4, {rWS}, s57 offen{SC} lds\ns_add_u32 m0, m0, 1024\ns_add_u32 s57, s57, 1024\ns_sub_u32 s15, s15, 1\ns_cmp_lg_u32 s15, 0\ns_cbranch_scc1 L_e0\ns_waitcnt vmcnt(0)")
    arrive(S_FULL)
    stamp("ld", 56)
    a("s_branch L_h_b1")
def loader():
    a("L_loader:")
    if "--fix50" in sys.argv and "--first" not in sys.argv: a("s_memrealtime s[78:79]")
    a(f"v_mov_b32 v4, 0\nv_lshl_add_u32 v5, {vL}, 2, {vSY}\nds_write_b32 v5, v4\ns_waitcnt lgkmcnt(0)\ns_barrier\ns_setprio 3\nv_lshlrev_b32 v6, 4, {vL}\nv_lshlrev_b32 v7, 6, {vL}")
    a(f"s_mul_i32 s12, {sHG}, 160")
    for y in range(5):
        a(f"v_add_u32 v8, {64*y}, {vL}\nv_mul_u32_u24 v9, 52429, v8\nv_lshrrev_b32 v9, 19, v9\nv_mul_u32_u24 v16, 10, v9\nv_sub_u32 v16, v8, v16\nv_mul_u32_u24 v9, 1280, v9\nv_lshlrev_b32 v16, 4, v16\nv_add3_u32 v{10+y}, v9, v16, s12")
    nonce_load()
    srd(40, pWS, WSZ)
    a(f"s_mov_b32 s68, 2\nv_mov_b32 v15, 2")
    issue_units("s68", 2)
    nonce()
    srd(44, pWO, 640*1280)
    for e in range(8): a(f"s_mov_b32 s{80+e}, {SLOTS[e]}")
    sN, sE, sSL, sWOo, sWOl, sPASSL = "s12", "s13", "s14", "s15", "s56", "s57"
    a(f"s_mov_b32 {sN}, 0\ns_mov_b32 {sPASSL}, 0\ns_mov_b32 s68, 8")
    def kv_issue(slot):
        l = a.lab("ki")
        a(f"s_add_u32 {sE}, {sXCD}, {sN}\ns_and_b32 {sE}, {sE}, 7\ns_mul_i32 s58, {sE}, {8*TILE}\ns_add_u32 s58, s58, {KVI}\ns_mov_b32 m0, {slot}\ns_mov_b32 s59, 0\n{l}:")
        for y in range(3): a(f"buffer_load_dwordx4 v6, {rWS}, s58 offen{SC} lds\ns_add_u32 m0, m0, 1024\ns_add_u32 s58, s58, 1024")
        a(f"s_add_u32 s59, s59, 1\ns_cmp_lt_u32 s59, 7\ns_cbranch_scc1 {l}\ns_add_u32 {sN}, {sN}, 1")
    def full(n, cnt):
        a(f"s_waitcnt vmcnt({cnt})"); arrive(S_FULL, vSY, "v15"); stamp("ld", 2+n)
    for k in range(4): a(f"s_mov_b32 s{88+k}, {FKV+4096*k}")
    a(f"s_mov_b32 {sN}, 1")
    poll("v7", [f"s{88+k}" for k in range(4)], 40, 1)
    stamp("ld", 14)
    wait_min4(S_QB, 3, 0, 20)
    kv_issue(SLOTS[1])
    wait_min4(S_QB, 5, 0, 20)
    wait_ge(S_FULL, 2, 0)
    a(f"s_setprio {opt('lprio', 0)}")
    a("L_ld_p:\ns_mov_b32 m0, s12\ns_nop 0\ns_movrels_b32 s14, s80")
    kv_issue("s14")
    a("s_waitcnt vmcnt(21)"); arrive(S_FULL, vSY, "v15")
    if PROF: a(f"s_memrealtime s[64:65]\ns_waitcnt lgkmcnt(0)\ns_mov_b32 m0, {sN}\nv_writelane_b32 v167, s64, m0")
    a(f"s_cmp_lt_u32 {sN}, 6\ns_cbranch_scc1 L_ld_p")
    full(5, 0)
    for n in (6, 7):
        wait_min4(S_FREE, n-5, 12, 20)
        kv_issue(SLOTS[n]); full(n, 0)
    a("s_branch L_ld_wo\nL_ld_e:")
    a(f"s_sub_u32 s61, {sN}, 1")
    wait_min4(S_FREE, "s61", 4, 20)
    a(f"s_and_b32 m0, {sN}, 7\ns_nop 0\ns_movrels_b32 {sSL}, s80")
    kv_issue(sSL)
    a("s_waitcnt vmcnt(0)"); arrive(S_FULL, vSY, "v15")
    a(f"s_cmp_lt_u32 {sN}, s68\ns_cbranch_scc1 L_ld_e\nL_ld_wo:")
    a(f"s_sub_u32 s69, s68, 8")
    def wo_chunks(c0, n):
        l = a.lab("wo")
        a(f"s_mov_b32 m0, {WO+5120*c0}\ns_mov_b32 {sWOo}, {c0*32*1280}\ns_mov_b32 s59, 0\n{l}:")
        for y in range(5):
            a(f"buffer_load_dwordx4 v{10+y}, {rA}, {sWOo} offen lds\ns_add_u32 m0, m0, 1024")
        a(f"s_add_u32 {sWOo}, {sWOo}, {32*1280}\ns_add_u32 s59, s59, 1\ns_cmp_lt_u32 s59, {n}\ns_cbranch_scc1 {l}")
    for e, (c0, n) in ((2, (0, 4)), (3, (4, 4)), (4, (8, 4)), (5, (12, 4))):
        a(f"s_add_u32 s61, s69, {e+1}")
        wait_min4(S_FREE, "s61", 16, 20)
        wo_chunks(c0, n)
    wait_ge(S_HB, HB_RG_FREE, 16)
    wo_chunks(16, 4)
    stamp("ld", 11)
    a(f"s_cmp_lg_u32 {sPASSL}, 0\ns_cbranch_scc1 L_ld_b2\ns_cmp_lg_u32 s2, 0\ns_cbranch_scc1 L_ld_b2")
    a(f"s_mov_b32 s58, {XN}"); set_flag("s58", 18)
    a(f"L_ld_b2:\ns_lshl_b32 s58, {sRB}, 3\ns_add_u32 s69, s58, {sHG}\ns_lshl_b32 s69, s69, 6\ns_add_u32 s69, s69, {FO}\ns_lshl_b32 s61, {sPASSL}, 2\ns_add_u32 s61, s61, 4\ns_waitcnt vmcnt(0)")
    a(f"s_mul_i32 s62, {sPASSL}, 16\ns_add_u32 s62, s62, 8")
    wait_min4(S_FREE, "s62", 4, 20)
    a("s_setprio 3")
    wait_ost("s61")
    a(f"s_cmp_lg_u32 {sPASSL}, 0\ns_cbranch_scc1 L_ld_o\ns_cmp_lt_u32 s60, 0x100\ns_cbranch_scc1 L_ld_o")
    a(f"s_mov_b32 {sPASSL}, 1\ns_mov_b32 s68, 24\ns_branch L_ld_e\nL_ld_o:")
    set_flag("s69", 18)
    arrive(S_WOK)
    a(f"s_lshl_b32 s58, s58, 6\ns_add_u32 s58, s58, {FO}\nv_and_b32 v7, 7, {vL}\nv_lshlrev_b32 v7, 6, v7")
    poll("v7", ["s58"], 18, 0)
    stamp("ld", 12)
    a("s_barrier")
    if "--fix50" in sys.argv:
        a("s_barrier\nL_fx:\ns_memrealtime s[64:65]\ns_waitcnt lgkmcnt(0)\ns_sub_u32 s64, s64, s78\ns_cmp_lt_u32 s64, 5000\ns_cbranch_scc1 L_fx")
    prof_flush()
    a("s_endpgm")

def tload(dst, off, nq):
    for q in range(nq):
        o = off + 1024*q
        if q % 4 == 0: a(f"s_mov_b32 s59, {o}")
        a(f"buffer_load_dwordx4 {vr(dst+4*q,4)}, v4, {rC}, s59 offen offset:{1024*(q%4)}")
hb_count = [0]
def hbar(sleep=2):
    hb_count[0] += 4
    arrive(S_HB); wait_ge(S_HB, hb_count[0], max(sleep, BSL))
def cmul(dr, di, xr, xi, tc, ts, conj, tmp):
    a(f"v_mul_f32 v{tmp}, v{xi}, v{ts}\nv_mul_f32 v{tmp+1}, v{xr}, v{ts}")
    if not conj: a(f"v_fma_f32 v{dr}, v{xr}, v{tc}, v{tmp}\nv_fma_f32 v{di}, v{xi}, v{tc}, -v{tmp+1}")
    else: a(f"v_fma_f32 v{dr}, v{xr}, v{tc}, -v{tmp}\nv_fma_f32 v{di}, v{xi}, v{tc}, v{tmp+1}")
def kv_head():
    sP = "s10"
    a(f"""s_setprio 3
s_sub_u32 {sP}, {sW}, 4
v_lshlrev_b32 v4, 4, {vL}
v_lshrrev_b32 v5, 4, {vL}
v_and_b32 v6, 15, {vL}
s_and_b32 s56, {sHG}, 1
s_lshl2_add_u32 s12, {sKVQ}, {sP}
s_lshl_b32 s13, s12, 2
v_add_u32 v7, s13, v5
v_and_b32 v8, 15, v7
v_xor_b32 v9, v8, v6
v_mul_u32_u24 v7, 1280, v7
v_lshlrev_b32 v9, 4, v9
s_mul_i32 s13, {sRB}, 81920
v_add3_u32 v9, v7, v9, s13
s_lshl_b32 s12, s12, 10
s_lshl_b32 s13, {sP}, 10
s_add_u32 m0, s13, {WKV}
s_mov_b32 s14, {sU0}
s_mov_b32 s50, 25600
s_mov_b32 s51, 0x20000
s_mov_b32 s46, {2048*1280}
s_mov_b32 s47, 0x20000
s_cmp_eq_u32 s56, 0
s_waitcnt lgkmcnt(0)
s_cselect_b32 s48, s{pWK}, s{pWV}
s_cselect_b32 s49, s{pWK+1}, s{pWV+1}
s_mov_b32 s44, s{pAX}
s_mov_b32 s45, s{pAX+1}""")
    for y in range(7):
        if y == 6: a(f"s_cmp_lg_u32 {sP}, 0\ns_cbranch_scc1 L_h_nw")
        a(f"buffer_load_dwordx4 v4, {rB}, s13 offen lds")
        if y < 6: a("s_add_u32 m0, m0, 4096\ns_add_u32 s13, s13, 4096")
    a("L_h_nw:")
    for n in range(5):
        a(f"s_add_u32 m0, s12, {X0+16384*n}\ns_lshl_b32 s15, s14, 8\nbuffer_load_dwordx4 v9, {rA}, s15 offen lds")
        if n < 4: next_u("s14")
    stamp("h", 54)
    a("s_barrier")
    nonce_load()
    srd(40, pWS, WSZ)
    a(f"s_cmp_ge_u32 {sP}, 2\ns_cbranch_scc1 L_iss")
    XK, WK_, FB, AC = 8, 20, 32, 80
    a(f"s_lshl_b32 s12, {sKVQ}, 12\nv_lshlrev_b32 v12, 8, v6\nv_add_u32 v12, s12, v12")
    for k in range(4): a(f"v_or_b32 v13, {4*k}, v5\nv_xor_b32 v13, v13, v6\nv_lshl_add_u32 v{XK+k}, v13, 4, v12\nv_add_u32 v{26+k}, 65536, v{XK+k}")
    a(f"""v_bfe_u32 v12, {vL}, 2, 2
v_lshl_add_u32 v12, v5, 3, v12
v_mul_u32_u24 v12, 40, v12
v_and_b32 v13, 3, {vL}
v_lshlrev_b32 v13, 3, v13
s_cmp_eq_u32 {sP}, 0
s_cselect_b32 s12, -1, 0
s_cselect_b32 s13, 0, 32
s_add_u32 s13, s13, {WKV}
v_and_b32 v13, s12, v13
v_add3_u32 v13, v12, v13, s13
s_mov_b32 s14, {sU0}""")
    for n in range(5):
        a(f"s_mul_i32 s15, s14, 5120\nv_add_u32 v{WK_+n}, s15, v13")
        if n < 4: next_u("s14")
    for i in range(4): a(f"v_mov_b32 v{AC+i}, 0")
    a(f"""s_lshl_b32 s12, {sRB}, 1
s_lshr_b32 s13, {sHG}, 2
s_add_u32 s12, s12, s13
s_mul_i32 s12, s12, {TILE}
s_add_u32 s12, s12, {KVI}
s_and_b32 s13, {sKVQ}, 1
v_lshrrev_b32 v14, 1, v5
v_and_b32 v15, 1, v5
s_mov_b64 s[68:69], 0
v_mov_b32 v17, 0
v_mov_b32 v18, 0
s_cmp_lg_u32 s56, 0
s_cbranch_scc1 L_h_va
s_lshl_b32 s13, s13, 4
v_add_u32 v16, s13, v6
v_lshlrev_b32 v19, 4, v16
v_lshl_add_u32 v19, v14, 9, v19
v_lshl_add_u32 v19, v15, 3, v19
v_lshlrev_b32 v16, 3, v16
v_add_u32 v16, 1024, v16
s_cmp_eq_u32 {sP}, 0
s_cselect_b64 vcc, -1, 0
s_cselect_b64 s[62:63], -1, 0xffff
v_cndmask_b32 v16, v16, v19, vcc
s_branch L_h_ad
L_h_va:
s_mul_i32 s15, s13, 640
s_add_u32 s15, s15, 1280
v_lshlrev_b32 v16, 4, v6
v_lshl_add_u32 v16, v15, 3, v16
v_add_u32 v16, s15, v16
v_lshl_add_u32 v19, v14, 8, v16
v_lshl_add_u32 v16, v14, 6, v16
v_add_u32 v16, 512, v16
s_mov_b32 s62, 0x00ff00ff
s_cmp_eq_u32 s13, 0
s_cselect_b32 s62, s62, 0x000f000f
s_cmp_eq_u32 {sP}, 0
s_cselect_b64 vcc, -1, 0
s_cselect_b32 s62, -1, s62
s_mov_b32 s63, s62
v_cndmask_b32 v16, v16, v19, vcc
s_cbranch_scc1 L_h_ad
v_subrev_u32 v14, 4, v6
v_lshl_add_u32 v14, v14, 2, v5
v_lshlrev_b32 v15, 3, v14
v_add_u32 v15, 2560, v15
v_cmp_lt_u32 s[68:69], 3, v6
v_mov_b32 v19, 0x3f803f80
v_mov_b32 v12, 0x3f80
v_cmp_eq_u32 vcc, 0, v14
v_lshrrev_b32 v14, 1, v14
v_cndmask_b32 v16, v16, v15, s[68:69]
v_cndmask_b32 v17, v17, v19, vcc
v_cndmask_b32 v18, v18, v12, vcc
v_cmp_eq_u32 vcc, 1, v14
s_nop 1
v_cndmask_b32 v17, v17, v19, vcc
v_cndmask_b32 v18, v18, v19, vcc
L_h_ad:""")
    nonce()
    a("s_waitcnt vmcnt(0)")
    stamp("h", 1)
    arrive(S_KVL)
    wait_ge(S_KVL, 4, 0)
    def kvrd(st):
        n, k = st >> 2, st & 3; f = FB + 8*(st % 5)
        a(f"ds_read_b128 {vr(f,4)}, v{XK+k if n < 4 else 26+k} offset:{16384*(n%4)}")
        for jh in range(2): a(f"ds_read_b64_tr_b16 {vr(f+4+2*jh,2)}, v{WK_+n} offset:{(32*k+4*jh)*40}")
    for typ in range(2):
        if typ == 0: a("s_cmp_lg_u32 s56, 0\ns_cbranch_scc1 L_h_vtype")
        else: a("L_h_vtype:")
        for st in range(5): kvrd(st)
        for st in range(20):
            f = FB + 8*(st % 5)
            a(f"s_waitcnt lgkmcnt({12 if st < 15 else (3*(19-st) + (1 if st > 15 else 0))})")
            if typ == 0: mfma16(AC, f+4, f, AC)
            else: mfma16(AC, f, f+4, AC)
            if st < 15: kvrd(st+5)
            if st == 15: arrive(S_KVD)
        if typ == 0:
            c = math.log2(math.e)/math.sqrt(20.0)
            cb = struct.unpack("<I", struct.pack("<f", c))[0]
            for i in range(4): a(f"v_mul_f32 v{AC+i}, {hex(cb)}, v{AC+i}")
            cvt(14, AC, AC+1); cvt(15, AC+2, AC+3)
            a("s_branch L_h_kvst")
        else:
            cvt(14, AC, AC+1); cvt(15, AC+2, AC+3)
            a("v_cndmask_b32 v14, v14, v17, s[68:69]\nv_cndmask_b32 v15, v15, v18, s[68:69]")
    a(f"L_h_kvst:\ns_mov_b64 exec, s[62:63]\nbuffer_store_dwordx2 v[14:15], v16, {rWS}, s12 offen sc1\ns_mov_b64 exec, -1")
    a(f"s_lshl_b32 s12, {sRB}, 3\ns_add_u32 s12, s12, {sHG}\ns_lshl_b32 s12, s12, 6\ns_add_u32 s12, s12, {FKV}")
    stamp("h", 2)
    a(f"s_waitcnt vmcnt(0)\ns_cmp_eq_u32 {sP}, 0\ns_cbranch_scc1 L_h_kvf")
    arrive(S_KVS)
    a("s_branch L_h_kvd\nL_h_kvf:")
    wait_ge(S_KVS, 1, 0)
    set_flag("s12", 16)
    a("L_h_kvd:")
    stamp("h", 3)
    epoch0()
def cmul2(re, im, tc, ts, conj, t0):
    if "--pk" not in sys.argv:
        for k in range(2): cmul(re+k, im+k, re+k, im+k, tc+k, ts+k, conj, t0+2*k)
        return
    ng = " neg_lo:[0,0,1] neg_hi:[0,0,1]"
    a(f"v_pk_mul_f32 {vr(t0,2)}, {vr(im,2)}, {vr(ts,2)}\nv_pk_mul_f32 {vr(t0+2,2)}, {vr(re,2)}, {vr(ts,2)}")
    a(f"v_pk_fma_f32 {vr(re,2)}, {vr(re,2)}, {vr(tc,2)}, {vr(t0,2)}{ng if conj else ''}\nv_pk_fma_f32 {vr(im,2)}, {vr(im,2)}, {vr(tc,2)}, {vr(t0+2,2)}{'' if conj else ng}")
HIMASK = opt("himask", 0x7f)
def hi(k):
    if HIMASK >> k & 1: a(f"s_setprio {HPRIO}")
def lo(): a("s_setprio 0")
def spectral():
    sP, sS0, sI0 = "s10", "s11", "s71"
    WRAW = 132
    vZ, vIMG, vLIN, vZ3, vTG, vWL, vTL, vUG, vZW, vOUT, vPL = 148, 149, 150, 151, 154, 157, 158, 159, 162, 165, "v7"
    sTS, sWG, sTG_, sUS, sUL, sOUT, sWS = 77, 78, 80, 81, 82, 86, 88
    a(f"""L_h_b1:
s_setprio 0
s_lshl_b32 {sS0}, {sXCD}, 5
s_add_u32 {sS0}, {sS0}, {sI}
s_getpc_b64 s[52:53]
L_pc:
s_add_u32 s52, s52, L_tables-L_pc
s_addc_u32 s53, s53, 0
s_mov_b32 s54, {TB.BLOB.nbytes}
s_mov_b32 s55, 0x20000
v_lshlrev_b32 v4, 4, {vL}
v_lshrrev_b32 v5, 4, {vL}
v_and_b32 v6, 15, {vL}
v_lshl_add_u32 v8, v5, 6, v6
v_lshlrev_b32 {vPL}, 6, {vL}
v_lshrrev_b32 v9, 5, {vL}
v_and_b32 v10, 31, {vL}
v_cmp_lt_u32 s[66:67], 31, {vL}
s_mul_i32 {sI0}, {sP}, 3
s_cmp_eq_u32 {sP}, 3
s_cselect_b32 {sI0}, 8, {sI0}
s_mul_i32 s14, {sRB}, 10
s_mul_i32 s15, {sHG}, 321
s_add_u32 s14, s14, s15
s_and_b32 s70, s14, 1
s_add_u32 s70, s70, {sI0}
s_lshr_b32 s14, s14, 1
s_lshl_b32 s{sWG}, s14, 2
s_mul_i32 s14, {sP}, {64*8*642}
s_add_u32 s{sWG}, s{sWG}, s14
s_add_u32 s{sWG+1}, s{sWG}, {32*8*642}
s_mul_i32 s14, {sP}, 3072
s_mul_i32 s{sTS}, {sS0}, {TP}
s_add_u32 s{sTS}, s{sTS}, s14
s_add_u32 s{sTS}, s{sTS}, {TBUF}
s_lshl_b32 s{sUS}, {sHG}, 5
s_add_u32 s{sUS}, s{sUS}, {sRB}
s_mul_i32 s{sUS}, s{sUS}, {UP}
s_add_u32 s{sUS}, s{sUS}, s14
s_add_u32 s{sUS}, s{sUS}, {UBUF}
s_add_u32 s{sWS}, s14, {RG}
v_add_u32 v{vLIN}, s{sWS}, v4
s_mul_i32 s14, {sHG}, 1408
s_mul_i32 s15, {sRB}, 40
s_add_u32 s14, s14, s15
s_mul_i32 s15, {sP}, {64*TP}
s_add_u32 s14, s14, s15
s_add_u32 s{sTG_}, s14, {TBUF}
s_mul_i32 s{sUL}, {sS0}, 48
s_add_u32 s{sUL}, s{sUL}, {UBUF}
s_add_u32 s{sUL+1}, s{sUL}, {32*UP}
s_add_u32 s{sUL+2}, s{sUL}, {64*UP}
s_add_u32 s{sUL+3}, s{sUL}, {96*UP}
s_lshl_b32 s12, {sP}, 8
s_add_u32 s12, s12, {sS0}
s_mul_i32 s{sOUT}, s12, 2560
s_add_u32 s{sOUT}, s{sOUT}, 1280
s_add_u32 s{sOUT+1}, s{sOUT}, {1024*2560}
v_mul_u32_u24 v{vOUT}, 40, v10
v_lshl_add_u32 v{vOUT}, v9, 3, v{vOUT}
v_mul_u32_u24 v{vZ}, 320, v9
v_add_u32 v{vZ}, v{vZ}, v10
s_lshl_b32 s14, {sP}, 2
s_add_u32 s14, s14, {ZS}
v_lshl_add_u32 v{vZ}, v{vZ}, 4, s14
s_lshl_b32 s14, {sP}, 5
v_add_u32 v11, s14, v10
v_mul_u32_u24 v{vIMG}, {4*1408}, v9
v_lshl_add_u32 v{vIMG}, v11, 2, v{vIMG}
v_add_u32 v{vIMG}, {RG}, v{vIMG}
v_lshlrev_b32 v{vWL}, 5, v8
s_lshl_b32 s14, s70, 1
s_add_u32 s14, s14, {RG}
v_add_u32 v{vWL}, s14, v{vWL}
v_mul_u32_u24 v{vTL}, 48, v8
s_lshl_b32 s14, {sI0}, 2
s_add_u32 s14, s14, {RG}
v_add_u32 v{vTL}, s14, v{vTL}
v_mul_u32_u24 v12, {128*UP}, v9
v_mov_b32 v13, 640
v_mov_b32 v14, 0""")
    for q in range(3):
        a(f"""v_add_u32 v15, {64*q}, {vL}
v_mul_u32_u24 v16, 43691, v15
v_lshrrev_b32 v16, 17, v16
v_mul_u32_u24 v17, 3, v16
v_sub_u32 v17, v15, v17
v_mul_u32_u24 v16, {TP}, v16
v_lshl_add_u32 v{vTG+q}, v17, 4, v16
v_add_u32 v15, {128*q}, v11
v_min_u32 v16, 320, v15
v_mul_u32_u24 v17, 52429, v16
v_lshrrev_b32 v17, 19, v17
v_min_u32 v17, 31, v17
v_mul_u32_u24 v17, {UP-40}, v17
v_lshl_add_u32 v16, v16, 2, v12
v_add_u32 v{vUG+q}, v16, v17
v_sub_u32 v16, 640, v15
v_cmp_lt_u32 vcc, 320, v15
v_cndmask_b32 v16, v15, v16, s[66:67]
v_cndmask_b32 v17, v16, v13, vcc
v_cmp_eq_u32 vcc, 640, v16
v_lshlrev_b32 v{vZW+q}, 4, v17
v_cndmask_b32 v16, v16, v14, vcc
v_lshlrev_b32 v{vZ3+q}, 4, v16""")
    C32, S32, N32, TW, F20, M3 = 8, 16, 24, 32, 56, 76
    AD, RE, IM, BO, TMP = 80, 96, 112, 80, 128
    srd(44, pBX, 2048*1280)
    a(f"""s_mul_i32 s12, s12, 1280
v_add_u32 v128, s12, v4
v_add_u32 v129, 1024, v128
v_add_u32 v130, {1024*1280-256}, v128
v_cmp_lt_u32 vcc, 15, {vL}
v_add_u32 v131, 1024, v130
s_mul_i32 s13, {sP}, 2560
s_add_u32 s13, s13, {BX}
v_cndmask_b32 v129, v129, v130, vcc
v_bfe_u32 v130, {vL}, 2, 2
v_lshl_add_u32 v130, v9, 2, v130
v_mul_u32_u24 v130, 40, v130
v_and_b32 v15, 3, {vL}
v_lshlrev_b32 v15, 3, v15
v_bfe_u32 v16, {vL}, 4, 1
v_cmp_eq_u32 vcc, 1, v16
v_mov_b32 v16, 32
v_lshrrev_b32 v5, 1, {vL}
v_cndmask_b32 v15, v15, v16, vcc
v_add3_u32 v130, v130, v15, s13
v_mul_u32_u24 v5, {8*642}, v5
v_and_b32 v6, 1, {vL}
v_lshl_add_u32 v5, v6, 4, v5
s_lshl_b32 s14, {sP}, 11
s_add_u32 s14, s14, {RG}
v_add_u32 v6, s14, v4""")
    wait_ge(S_FULL, 2*B1AT, 3)
    if "--lateb" in sys.argv: wait_min4(S_FREE, 8, 32, 12)
    stamp("h", 4)
    a(f"s_mov_b32 m0, s13\ns_nop 0\nbuffer_load_dwordx4 v128, {rA}, 0 offen lds\ns_add_u32 m0, m0, 1024\ns_nop 0\nbuffer_load_dwordx4 v129, {rA}, 0 offen lds")
    a(f"s_add_u32 m0, m0, 1024\ns_mov_b32 exec_hi, 0\nbuffer_load_dwordx4 v131, {rA}, 0 offen lds\ns_mov_b64 exec, -1")
    tload(C32, TB.OFF["C32_0"], 18)
    srd(44, pWR, 2048*642); srd(48, pWI, 2048*642)
    a("s_waitcnt vmcnt(18)")
    for k in range(4):
        for jh in range(2): a(f"ds_read_b64_tr_b16 {vr(AD+4*k+2*jh,2)}, v130 offset:{1280*(k>>1) + 640*(k&1) + 320*jh}")
    a("s_waitcnt vmcnt(0) lgkmcnt(0)")
    stamp("h", 30)
    for z, rr in enumerate((rA, rB)):
        for y in range(2): a(f"buffer_load_dwordx4 {vr(WRAW+8*z+4*y,4)}, v5, {rr}, s{sWG+y} offen")
    hi(0)
    for k, (tr, ti) in enumerate(((C32, N32), (C32+4, N32+4), (S32, C32), (S32+4, C32+4))):
        mfma32(RE, AD+4*k, tr, RE if k else None); mfma32(IM, AD+4*k, ti, IM if k else None)
    for r in range(0, 12, 2): cmul2(RE+r, IM+r, TW+r, TW+12+r, False, TMP)
    for i in range(4): cvt(BO+i, RE+2*i, RE+2*i+1)
    for i in range(4): cvt(BO+4+i, IM+2*i, IM+2*i+1)
    for i in range(2): cvt(BO+8+i, RE+8+2*i, RE+9+2*i)
    for i in range(2): cvt(BO+10+i, IM+8+2*i, IM+9+2*i)
    for k, (tr, ti) in enumerate(((F20, F20+8), (F20+4, F20), (F20+12, F20+16))):
        mfma32(RE, tr, BO+4*k, RE if k else None); mfma32(IM, ti, BO+4*k, IM if k else None)
    for r in range(10):
        cvt(TW+r, RE+r, IM+r); a(f"ds_write_b32 v{vZ}, v{TW+r} offset:{512*r}")
    lo()
    stamp("h", 31)
    hbar()
    stamp("h", 32)
    for q in range(3): a(f"ds_read_b128 {vr(BO+4*q,4)}, v{vZ3+q} offset:{ZS}")
    DD = [RE, IM, TW]
    hi(1)
    for q in range(3):
        a(f"s_waitcnt lgkmcnt({2-q})"); mfma32(DD[q], M3, BO+4*q, None)
    for q in range(3):
        if q == 2: a(f"s_cmp_eq_u32 {sP}, 3\ns_cbranch_scc1 L_b1_sk")
        for t in range(4):
            cvt(BO+4*q+t, DD[q]+2*t, DD[q]+2*t+1)
            a(f"ds_write_b32 v{vIMG}, v{BO+4*q+t} offset:{512*q+1408*t}")
    a("L_b1_sk:")
    lo()
    hbar()
    for q in range(3): a(f"ds_read_b128 {vr(BO+4*q,4)}, v{vLIN} offset:{1024*q}")
    for q in range(3):
        if q == 2: a(f"s_cmp_eq_u32 {sP}, 3\ns_cbranch_scc1 L_b1_s2")
        a(f"s_waitcnt lgkmcnt({2-q})\nbuffer_store_dwordx4 {vr(BO+4*q,4)}, v4, {rWS}, s{sTS} offen offset:{1024*q} sc1")
    a("L_b1_s2:")
    stamp("h", 33)
    G_, TF, TI, H_, F16, TM = 8, 16, 24, 32, 40, 48
    WF, AT, R2, OUTR = 60, 84, 96, 120
    for i in range(24): a(f"v_mov_b32 v{WF+i}, 0")
    a("s_waitcnt vmcnt(0) lgkmcnt(0)")
    stamp("h", 5)
    hbar()
    a(f"s_cmp_lg_u32 {sP}, 0\ns_cbranch_scc1 L_b2_nf\ns_lshl_b32 s58, s2, 6\ns_add_u32 s58, s58, {FB1}")
    set_flag("s58", 52)
    a(f"L_b2_nf:")
    for z in range(2):
        for y in range(2): a(f"ds_write_b128 v6, {vr(WRAW+8*z+4*y,4)} offset:{8192*z+1024*y}")
    a(f"s_lshl_b32 s59, {sHG}, 13\ns_add_u32 s59, s59, {TB.OFF['B2_0']}")
    for q in range(8):
        if q == 4: a("s_add_u32 s59, s59, 4096")
        a(f"buffer_load_dwordx4 {vr(G_+4*q,4)}, v4, {rC}, s59 offen offset:{1024*(q%4)}")
    tload(F16, TB.OFF["F16"], 2)
    hbar()
    stamp("h", 34)
    for t in range(3):
        for z in range(2):
            for r in range(4): a(f"ds_read_u16_d16_hi v{WF+8*t+4*z+r}, v{vWL} offset:{8192*z+512*r+2*t}")
    a(f"s_cmp_lg_u32 {sP}, 0\ns_cbranch_scc1 L_b2_np")
    for k in range(4): a(f"s_mov_b32 s{72+k}, {FB1+4096*k}")
    poll(vPL, ["s72", "s73", "s74", "s75"], 52, 4)
    stamp("h", 41)
    a("L_b2_np:")
    hbar(4)
    stamp("h", 6)
    a(f"s_mov_b32 m0, s{sWS}")
    for y in range(3):
        a(f"buffer_load_dwordx4 v{vTG+y}, {rWS}, s{sTG_} offen{SC} lds")
        if y < 2: a("s_add_u32 m0, m0, 1024")
    stamp("h", 35)
    a("s_waitcnt vmcnt(0)")
    hbar()
    for t in range(3):
        for r in range(4): a(f"ds_read_b32 v{AT+4*t+r}, v{vTL} offset:{768*r+4*t}")
    arrive(S_HB)
    a("s_waitcnt lgkmcnt(1)")
    hi(2)
    stamp("h", 36)
    def tw_stage(tc, ts, conj, first_im):
        for t in range(3):
            re, im = R2+8*t, R2+8*t+4
            for r in (0, 2): cmul2(re+r, im+r, tc(t)+r, ts(t)+r, conj, TM)
            x, y = (im, re) if first_im else (re, im)
            cvt(AT+4*t, x, x+1); cvt(AT+4*t+1, x+2, x+3); cvt(AT+4*t+2, y, y+1); cvt(AT+4*t+3, y+2, y+3)
    for t in range(3): mfma16(R2+8*t, AT+4*t, G_, None); mfma16(R2+8*t+4, AT+4*t, G_+4, None)
    tw_stage(lambda t: TF, lambda t: TF+4, False, False)
    for t in range(3): mfma16(R2+8*t, F16, AT+4*t, None); mfma16(R2+8*t+4, F16+4, AT+4*t, None)
    tw_stage(lambda t: WF+8*t, lambda t: WF+8*t+4, True, True)
    for t in range(3): mfma16(R2+8*t, AT+4*t, F16+4, None); mfma16(R2+8*t+4, AT+4*t, F16, None)
    tw_stage(lambda t: TI, lambda t: TI+4, True, False)
    for t in range(3): mfma16(R2+8*t, H_, AT+4*t, None); mfma16(R2+8*t+4, H_+4, AT+4*t, None)
    hb_count[0] += 4; wait_ge(S_HB, hb_count[0], 1)
    hi(3)
    for t in range(3):
        for r in range(4):
            cvt(OUTR+4*t+r, R2+8*t+r, R2+8*t+4+r)
            a(f"ds_write_b32 v{vTL}, v{OUTR+4*t+r} offset:{768*r+4*t}")
    lo()
    hbar()
    for q in range(3): a(f"ds_read_b128 {vr(OUTR+4*q,4)}, v{vLIN} offset:{1024*q}")
    for q in range(3): a(f"s_waitcnt lgkmcnt({2-q})\nbuffer_store_dwordx4 {vr(OUTR+4*q,4)}, v4, {rWS}, s{sUS} offen offset:{1024*q} sc1")
    global HB_RG_FREE
    HB_RG_FREE = hb_count[0] + 4
    stamp("h", 37)
    M3I, I20, TW3 = 32, 36, 56
    BO, DD, AD, RE, IM, AX = 88, [100, 116, 132], 88, 100, 116, 132
    a("s_waitcnt vmcnt(0)")
    stamp("h", 7)
    hbar()
    a(f"s_cmp_lg_u32 {sP}, 0\ns_cbranch_scc1 L_b3_nf\ns_lshl_b32 s58, s2, 6\ns_add_u32 s58, s58, {FB2}")
    set_flag("s58", 100)
    a("L_b3_nf:")
    tload(C32, TB.OFF["C32_0"], 6); tload(M3I, TB.OFF["M3I"], 14)
    srd(44, pOUT, 2048*2560)
    a(f"s_cmp_lg_u32 {sP}, 0\ns_cbranch_scc1 L_b3_np")
    for k in range(4): a(f"s_mov_b32 s{72+k}, {FB2+4096*k}")
    poll(vPL, ["s72", "s73", "s74", "s75"], 104, 4)
    stamp("h", 42)
    a("L_b3_np:")
    hbar(4)
    stamp("h", 8)
    for q in range(3):
        for t in range(4): a(f"buffer_load_dword v{BO+4*q+t}, v{vUG+q}, {rWS}, s{sUL+t} offen{SC}")
    stamp("h", 38)
    if "--nogate3" not in sys.argv: wait_min4(S_FREE, 8, 2, 100)
    hi(4)
    for q in range(3):
        a(f"s_waitcnt vmcnt({8-4*q})"); mfma32(DD[q], M3I, BO+4*q, None)
    stamp("h", 39)
    a(f"s_mov_b32 s62, 1\ns_mov_b32 s63, 1\ns_cmp_eq_u32 {sP}, 0\ns_cbranch_scc1 L_b3_f0\ns_cmp_eq_u32 {sP}, 2\ns_cbranch_scc1 L_b3_f2\ns_branch L_b3_fd")
    for lab, q in (("L_b3_f0", 0), ("L_b3_f2", 2)):
        a(f"{lab}:\ns_nop 11")
        for r in range(8):
            d = DD[q]+r
            a(f"v_mul_f32 v3, 0.5, v{d}\nv_mul_f32 v7, 0.5, v{d}\nv_permlane32_swap_b32 v3, v7\nv_add_f32 v3, v3, v7\nv_cndmask_b32 v{d}, v{d}, v3, s[62:63]")
        if q == 0: a("s_branch L_b3_fd")
    a("L_b3_fd:\ns_nop 8")
    for q in range(3):
        for t in range(4): cvt(BO+4*q+t, DD[q]+2*t, DD[q]+2*t+1)
        a(f"ds_write_b128 v{vZW+q}, {vr(BO+4*q,4)} offset:{ZS}")
    hbar()
    stamp("h", 40)
    for r in range(10): a(f"ds_read_b32 v{AD+r}, v{vZ} offset:{512*r}")
    a("s_waitcnt lgkmcnt(0)")
    mfma32(RE, AD, I20, None); mfma32(IM, AD, I20+8, None)
    mfma32(RE, AD+4, I20+4, RE); mfma32(IM, AD+4, I20+12, IM)
    mfma32h(RE, AD+8, I20+16, RE); mfma32h(IM, AD+8, I20+18, IM)
    for r in range(0, 16, 2): cmul2(RE+r, IM+r, TW3+r, TW3+16+r, True, 88)
    for i in range(8): cvt(AX+i, RE+2*i, RE+2*i+1)
    for i in range(8): cvt(AX+8+i, IM+2*i, IM+2*i+1)
    for k, (tr, ti) in enumerate(((C32, S32), (C32+4, S32+4), (N32, C32), (N32+4, C32+4))):
        mfma32(RE, AX+4*k, tr, RE if k else None); mfma32(IM, AX+4*k, ti, IM if k else None)
    for z, D in enumerate((RE, IM)):
        for G in range(3):
            o = 88 + 6*z + 2*G
            cvt(o, D+4*G, D+4*G+1); cvt(o+1, D+4*G+2, D+4*G+3)
            if G == 2: a("s_mov_b32 exec_hi, 0")
            a(f"buffer_store_dwordx2 {vr(o,2)}, v{vOUT}, {rA}, s{sOUT+z} offen offset:{16*G}{OSC}")
            if G == 2: a("s_mov_b64 exec, -1")
    stamp("h", 10)
    a("s_branch L_tail")

prologue()
kv_head()
issuers()
att_head()
att_main()
tail()
spectral()
loader()
a("L_exit:\ns_endpgm")
if "--nobc" in sys.argv or "--nobm" in sys.argv or "--nobv" in sys.argv:
    i0 = a.l.index("L_h_b1:"); i1 = a.l.index("L_loader:")
    kill = []
    if "--nobc" in sys.argv or "--nobm" in sys.argv: kill += ["v_mfma"]
    if "--nobc" in sys.argv or "--nobv" in sys.argv: kill += ["v_fma_f32", "v_mul_f32", "v_cvt_pk"]
    a.l = a.l[:i0] + [x for x in a.l[i0:i1] if not x.startswith(tuple(kill))] + a.l[i1:]
body = a.finish()
hdr = f"""; MQA attention (heads 32 x 20) + output projection, and a 2-D real-FFT filter, in one launch.
; 256 workgroups x 9 waves: waves 0-3 attention, 4-7 spectral branch (+K/V projection), 8 LDS loader.
; @launch grid=(256,1,1) block=(576,1,1) lds={LDS_BYTES}
.amdgcn_target "amdgcn-amd-amdhsa--gfx950"
.text
.globl {NAME}_kernel
.p2align 8
.type {NAME}_kernel,@function
{NAME}_kernel:
"""
tab = ".p2align 8\n.type L_tables,@object\nL_tables:\n"
B = TB.BLOB
for i in range(0, len(B), 8): tab += ".long " + ",".join(f"0x{x:x}" for x in B[i:i+8]) + "\n"
tab += f".size L_tables, {B.nbytes}\n"
ftr = f""".section .rodata,"a"
.p2align 6
.amdhsa_kernel {NAME}_kernel
  .amdhsa_next_free_vgpr 168
  .amdhsa_next_free_sgpr 96
  .amdhsa_accum_offset 168
  .amdhsa_group_segment_fixed_size 0
  .amdhsa_kernarg_size 88
  .amdhsa_user_sgpr_count 2
  .amdhsa_user_sgpr_kernarg_segment_ptr 1
  .amdhsa_system_sgpr_workgroup_id_x 1
.end_amdhsa_kernel
"""
open(OUT, "w").write(hdr + body + tab + ftr)
print("wrote", OUT, len(hdr + body + tab + ftr), "bytes;", len(a.l), "lines")
```

```python
import sys
HDR = """; @launch grid=({grid},1,1) block=({block},1,1) lds={lds}
; @iters {iters}
.amdgcn_target "amdgcn-amd-amdhsa--gfx950"
.text
.globl mb_kernel
.p2align 8
.type mb_kernel,@function
mb_kernel:
    s_load_dwordx4 s[4:7], s[0:1], 0
    v_lshrrev_b32 v200, 6, v0
    s_nop 0
    v_readfirstlane_b32 s20, v200
    s_mul_i32 s21, s2, {wpb}
    s_add_u32 s21, s21, s20
    s_waitcnt lgkmcnt(0)
    s_mov_b32 s8, s4
    s_mov_b32 s9, s5
    s_mov_b32 s10, 0x1000000
    s_mov_b32 s11, 0x20000
    s_mov_b32 s12, s6
    s_mov_b32 s13, s7
    s_mov_b32 s14, 0x1000000
    s_mov_b32 s15, 0x20000
    v_lshlrev_b32 v201, 4, v0
"""
FTR = """
    s_memtime s[26:27]
    s_memrealtime s[30:31]
    s_waitcnt lgkmcnt(0)
    s_sub_u32 s26, s26, s24
    s_sub_u32 s30, s30, s28
    v_mov_b32 v204, s26
    v_mov_b32 v205, s30
    v_mov_b32 v206, v{x}
    v_mov_b32 v207, v{y}
    s_lshl_b32 s21, s21, 4
    v_mov_b32 v202, s21
    v_and_b32 v203, 63, v0
    v_cmp_eq_u32 vcc, 0, v203
    s_and_saveexec_b64 s[32:33], vcc
    buffer_store_dwordx4 v[204:207], v202, s[12:15], 0 offen
    s_waitcnt vmcnt(0)
    s_endpgm
.section .rodata,"a"
.p2align 6
.amdhsa_kernel mb_kernel
  .amdhsa_next_free_vgpr {nvgpr}
  .amdhsa_next_free_sgpr 102
  .amdhsa_accum_offset {acc}
  .amdhsa_group_segment_fixed_size 0
  .amdhsa_kernarg_size 16
  .amdhsa_user_sgpr_count 2
  .amdhsa_user_sgpr_kernarg_segment_ptr 1
  .amdhsa_system_sgpr_workgroup_id_x 1
.end_amdhsa_kernel
"""
def kernel(name, body, init="", grid=256, block=256, lds=0, iters=2000, nvgpr=256, x=0, y=1, unit=1):
    s = HDR.format(grid=grid, block=block, lds=lds, iters=iters*unit, wpb=block//64)
    for i in range(0, 192, 4):
        s += f"    buffer_load_dwordx4 v[{i}:{i+3}], v201, s[8:11], 0 offen offset:{(i//4*16)%4096}\n" if i else ""
    s += "    s_waitcnt vmcnt(0)\n"
    s += init
    s += f"    s_mov_b32 s22, {iters}\n    s_barrier\n    s_memtime s[24:25]\n    s_memrealtime s[28:29]\n    s_waitcnt lgkmcnt(0)\n.p2align 6\nL_loop:\n"
    s += body
    s += "    s_sub_u32 s22, s22, 1\n    s_cmp_lg_u32 s22, 0\n    s_cbranch_scc1 L_loop\n    s_nop 15\n s_nop 15\n"
    s += FTR.format(x=x,y=y,nvgpr=nvgpr,acc=min(256,nvgpr))
    open(name, "w").write(s)
```

```python
from gen1 import kernel
def body(mode):
    s = ""
    if mode == "m0":
        s += "    s_mov_b32 m0, s40\n    s_mov_b32 s47, 0\n"
        for i in range(12): s += "    s_nop 0\n    buffer_load_dwordx4 v10, s[8:11], s47 offen lds\n    s_add_u32 m0, m0, 1024\n    s_add_u32 s47, s47, 1024\n"
    if mode == "imm":
        for g in range(3):
            s += f"    s_add_u32 m0, s40, {4096*g}\n    s_mov_b32 s47, {4096*g}\n"
            for i in range(4): s += f"    buffer_load_dwordx4 v10, s[8:11], s47 offen offset:{1024*i} lds\n"
    if mode == "reg":
        for g in range(3):
            s += f"    s_mov_b32 s47, {4096*g}\n"
            for i in range(4): s += f"    buffer_load_dwordx4 v[{20+16*g+4*i}:{23+16*g+4*i}], v10, s[8:11], s47 offen offset:{1024*i}\n"
    s += "    s_waitcnt vmcnt(12)\n"
    return s
init = "    v_and_b32 v10, 63, v0\n    v_lshlrev_b32 v10, 4, v10\n    s_mul_i32 s40, s20, 12288\n"
for blk in (64, 128, 256):
    for m in ("m0","imm","reg"):
        kernel(f"dm_{m}_{blk}.s", body(m), init=init, block=blk, lds=65536, iters=100, unit=12)
```

```python
from gen1 import kernel
import gen1
S = [64,80]; P=[96,112]; O=[128,144]; Q=[4,12]; Pb=[160,168]
def e(X,i): return f"    v_exp_f32 v{P[X]+i}, v{S[X]+i}\n"
def cv(XX,i): return f"    v_cvt_pk_bf16_f32 v{Pb[XX]+i}, v{P[XX]+2*i}, v{P[XX]+2*i+1}\n"
def half(X, mode, K, Vp, Vc, lds_ops):
    Y = 1-X
    qk1 = f"    v_mfma_f32_32x32x16_bf16 v[{S[Y]}:{S[Y]+15}], v[{K}:{K+3}], v[{Q[Y]}:{Q[Y]+3}], 0\n"
    qk2 = f"    v_mfma_f32_32x32x8_bf16 v[{S[Y]}:{S[Y]+15}], v[{K+4}:{K+5}], v[{Q[Y]+4}:{Q[Y]+5}], v[{S[Y]}:{S[Y]+15}]\n"
    pv2 = f"    v_smfmac_f32_32x32x32_bf16 v[{O[Y]}:{O[Y]+15}], v[{Vp+4}:{Vp+7}], v[{P[Y]+8}:{P[Y]+15}], v52\n"
    pv1 = f"    v_smfmac_f32_32x32x32_bf16 v[{O[X]}:{O[X]+15}], v[{Vc}:{Vc+3}], v[{P[X]}:{P[X]+7}], v52\n"
    E = lambda a,b: [e(X,i) for i in range(a,b)]
    if mode == "A":
        slots = [(qk1,E(0,4)),(qk2,E(4,8)),(pv2,E(8,12)),(pv1,E(12,16))]
    elif mode == "Aqk":
        slots = [(qk1,E(0,4)),(qk2,E(4,8)),("",E(8,12)),("",E(12,16))]
    elif mode == "Apv":
        slots = [("",E(0,4)),("",E(4,8)),(pv2,E(8,12)),(pv1,E(12,16))]
    elif mode in ("B","C","Bqk","Bpv"):
        def qk(j):
            qs = j//2; kt = j%2
            return f"    v_mfma_f32_16x16x32_bf16 v[{S[Y]+4*j}:{S[Y]+4*j+3}], v[{K+4*kt}:{K+4*kt+3}], v[{Q[Y]+4*qs}:{Q[Y]+4*qs+3}], 0\n"
        def pv(XX, V, qs, db):
            o = O[XX]+8*qs+4*db
            if mode == "C":
                return f"    v_mfma_f32_16x16x32_bf16 v[{o}:{o+3}], v[{V+4*db}:{V+4*db+3}], v[{Pb[XX]+4*qs}:{Pb[XX]+4*qs+3}], v[{o}:{o+3}]\n"
            return f"    v_smfmac_f32_16x16x64_bf16 v[{o}:{o+3}], v[{V+4*db}:{V+4*db+3}], v[{P[XX]+8*qs}:{P[XX]+8*qs+7}], v52\n"
        ms = [qk(0),qk(1),pv(Y,Vp,1,0),pv(Y,Vp,1,1),qk(2),qk(3),pv(X,Vc,0,0),pv(X,Vc,0,1)]
        if mode=="Bqk": ms = [m if "smfmac" not in m else "" for m in ms]
        if mode=="Bpv": ms = [m if "smfmac" in m else "" for m in ms]
        slots = [(ms[i], E(2*i,2*i+2)) for i in range(8)]
        if mode == "C":
            cvs = [cv(Y,7),cv(X,0),cv(X,1),cv(X,2),cv(X,3),cv(X,4),cv(X,5),cv(X,6)]
            slots = [(ms[i], [cvs[i]]+E(2*i,2*i+2)) for i in range(8)]
    s = ""
    for n,(m,v) in enumerate(slots):
        s += m
        if n < len(lds_ops): s += lds_ops[n]
        s += "".join(v)
    return s
def body(mode, unroll=2):
    s = ""
    for u in range(unroll):
        K = [20,28][u%2]; Kn=[20,28][(u+1)%2]; V=[36,44][u%2]; Vp=[36,44][(u+1)%2]
        if mode[0]=="A":
            l1 = [f"    ds_read_b128 v[{Kn}:{Kn+3}], v53 offset:{u*1024}\n", f"    ds_read_b32 v{Kn+4}, v54 offset:{u*256}\n"]
        else:
            l1 = [f"    ds_read_b128 v[{Kn}:{Kn+3}], v59 offset:{u*2048}\n", f"    ds_read_b128 v[{Kn+4}:{Kn+7}], v59 offset:{1024+u*2048}\n"]
        l2 = ["", "", "", f"    ds_read_b128 v[{Vp}:{Vp+3}], v55 offset:{4096+u*2048}\n    ds_read_b128 v[{Vp+4}:{Vp+7}], v55 offset:{5120+u*2048}\n"]
        s += "    s_waitcnt lgkmcnt(2)\n"
        s += half(0, mode, K, Vp, V, l1)
        s += half(1, mode, K, V, V, l2)
    s += "    v_add_u32 v53, 8192, v53\n    v_and_b32 v53, 0xffff, v53\n    v_mov_b32 v55, v53\n    v_mov_b32 v59, v53\n"
    return s
init = "    v_mov_b32 v52, 0xdddddddd\n    v_and_b32 v53, 63, v0\n    v_lshlrev_b32 v54, 2, v53\n    v_lshlrev_b32 v53, 4, v53\n"
init += "".join(f"    v_and_b32 v{i}, 0xbeffbeff, v{i}\n" for i in range(4,20))
init += "    v_mov_b32 v57, v53\n"
for j in range(2):
    init += "".join(f"    ds_write_b128 v57, v[{64+4*i}:{67+4*i}] offset:{1024*i}\n" for i in range(32))
    init += "    v_add_u32 v57, 32768, v57\n"
init += "    v_mov_b32 v60, 0\n    v_mov_b32 v61, 0\n    v_mov_b32 v62, 0\n    v_mov_b32 v63, 0\n"
def zero_lds(cond, offs):
    s = "    s_waitcnt lgkmcnt(0)\n    s_barrier\n" + cond + "    s_and_saveexec_b64 s[34:35], vcc\n    v_mov_b32 v57, v53\n"
    for j in range(8):
        s += "".join(f"    ds_write_b128 v57, v[60:63] offset:{o}\n" for o in offs)
        s += "    v_add_u32 v57, 8192, v57\n"
    s += "    s_mov_b64 exec, s[34:35]\n"
    return s
def zinit(mode):
    s = ""
    if mode[0]=="A":
        s += "    v_mov_b32 v9, 0\n    v_mov_b32 v17, 0\n    v_mov_b32 v25, 0\n    v_mov_b32 v33, 0\n"
        s += zero_lds("    v_and_b32 v58, 31, v0\n    v_cmp_lt_u32 vcc, 20, v58\n", [4096,5120,6144,7168])
    else:
        s += zero_lds("    v_and_b32 v58, 63, v0\n    v_cmp_lt_u32 vcc, 39, v58\n", [0,1024,2048,3072])
        s += "    v_and_b32 v58, 63, v0\n    v_cmp_lt_u32 vcc, 39, v58\n    s_nop 1\n" + "".join(f"    v_cndmask_b32 v{i}, v{i}, v60, vcc\n" for i in range(4,20))
        s += zero_lds("    v_and_b32 v58, 15, v0\n    v_cmp_lt_u32 vcc, 4, v58\n", [5120,7168])
    s += "    v_mov_b32 v55, v53\n    v_mov_b32 v59, v53\n    s_waitcnt lgkmcnt(0)\n"
    s += "".join(f"    v_mov_b32 v{i}, 0\n" for i in range(64,176))
    if mode in ("Apv","Bpv"):
        s += "    buffer_load_dwordx4 v[64:67], v201, s[8:11], 0 offen\n    s_waitcnt vmcnt(0)\n"
        s += "".join(f"    v_xor_b32 v{64+i}, {hex((i*0x9E3779B1)&0x807fffff)}, v{64+(i%4)}\n" for i in range(4,32))
    return s
for blk in (256,512):
  for mode in ("A","Aqk","Apv","B","C","Bqk","Bpv"):
    iters = 32 if blk==256 else 16
    kernel(f"at3_{mode}_{blk}.s", body(mode), init=init+zinit(mode), block=blk, lds=65536+1024, iters=iters, unit=4, x=128, y=144)
```

```python
from gen1 import kernel
from gen_e import init, zinit
QA1,QA2,QB1,QB2 = 4,8,12,16
KB1=[20,28]; KB2=[24,32]; VB=[36,44]
def R(t,b,n): return f"{t}[{b}:{b+n-1}]"
def body(var):
    ot = "a" if var in ("agprO",) else "v"
    OA,OB = (0,16) if ot=="a" else (128,144)
    s=""
    def m32(d,A,B,C): return f"    v_mfma_f32_32x32x16_bf16 v[{d}:{d+15}], v[{A}:{A+3}], v[{B}:{B+3}], {('v[%d:%d]'%(C,C+15)) if C is not None else 0}\n"
    def m8(d,A,B,C): return f"    v_mfma_f32_32x32x8_bf16 v[{d}:{d+15}], v[{A}:{A+1}], v[{B}:{B+1}], {('v[%d:%d]'%(C,C+15)) if C is not None else 0}\n"
    def smf(O,V,P): return f"    v_smfmac_f32_32x32x32_bf16 {R(ot,O,16)}, v[{V}:{V+3}], v[{P}:{P+7}], v52\n"
    def ex(P,S,i0,n=4): return "".join(f"    v_exp_f32 v{P+i}, v{S+i}\n" for i in range(i0,i0+n))
    for j in range(8):
        kb=vb=j&1; o=(j%2)*2048
        if var == "inplace":
            SA=PA=[64,96][j&1]; SB=PB=[80,112][j&1]; SAn=[64,96][1-(j&1)]; PBp=[80,112][1-(j&1)]
        else:
            SA,SB,PA,PB = 64,80,96,112; SAn=SA; PBp=PB
        rk1=f"    ds_read_b128 v[{KB1[kb]}:{KB1[kb]+3}], v53 offset:{o}\n"; rk2=f"    ds_read_b64 v[{KB2[kb]}:{KB2[kb]+1}], v54 offset:{o}\n"
        rv0=f"    ds_read_b128 v[{VB[1-vb]}:{VB[1-vb]+3}], v55 offset:{4096+o}\n"; rv1=f"    ds_read_b128 v[{VB[1-vb]+4}:{VB[1-vb]+7}], v55 offset:{5120+o}\n"
        w="    s_waitcnt lgkmcnt(0)\n"
        if var == "noqk2":
            m8 = lambda d,A,B,C: ""
        s+=m32(SB,KB1[kb],QB1,None)+ex(PA,SA,0)+m8(SB,KB2[kb],QB2,SB)+ex(PA,SA,4)+smf(OB,VB[1-vb]+4,PBp+8)+ex(PA,SA,8)+w+smf(OA,VB[vb],PA)+rk1+ex(PA,SA,12)
        s+=m32(SAn,KB1[1-kb],QA1,None)+rk2+ex(PB,SB,0)+m8(SAn,KB2[1-kb],QA2,SAn)+rv0+ex(PB,SB,4)+smf(OA,VB[vb]+4,PA+8)+rv1+ex(PB,SB,8)+smf(OB,VB[vb],PB)+ex(PB,SB,12)
    return s
ini = init + zinit("A").replace("v_mov_b32 v9, 0","v_nop").replace("v_mov_b32 v17, 0","v_nop") + "    v_lshlrev_b32 v54, 1, v54\n"
ini += "    v_cmp_lt_u32 vcc, 31, v201\n"
ini = ini + "    v_and_b32 v58, 63, v0\n    v_cmp_lt_u32 vcc, 31, v58\n    s_nop 1\n" + "".join(f"    v_cndmask_b32 v{r}, v{r}, v60, vcc\n" for r in (8,9,16,17))
for v in ("base","inplace","agprO","noqk2"):
    for k in range(2):
        kernel(f"ap_{v}_{k}.s", body(v), init=ini + ("".join(f"    v_accvgpr_write_b32 a{i}, 0\n" for i in range(32)) if v=="agprO" else ""), block=256, lds=65536+1024, iters=8, unit=16, x=128, y=144, nvgpr=288 if v=="agprO" else 256)
```

```python
from gen1 import kernel
m32 = lambda d: f"    v_mfma_f32_32x32x16_bf16 v[{d}:{d+15}], v[52:55], v[48:51], v[{d}:{d+15}]\n"
m16 = lambda d: f"    v_mfma_f32_16x16x32_bf16 v[{d}:{d+3}], v[72:75], v[56:59], v[{d}:{d+3}]\n"
sw = "".join(f"    v_permlane16_swap_b32 v{32+i}, v{40+i}\n" for i in range(4))
kernel("mx_a.s", (m32(108)+m32(108)+m16(124)+m16(128))*8, iters=200, unit=8)
kernel("mx_b.s", (m32(108)+m32(108)+sw+m16(124)+m16(128))*8, iters=200, unit=8)
kernel("mx_c.s", (m32(108)+m16(124)+m32(108)+m16(128))*8, iters=200, unit=8)
kernel("mx_d.s", (m32(108)+m32(88)+m16(124)+m16(128))*8, iters=200, unit=8)
kernel("mx_e.s", (m32(108)+m32(108))*8, iters=200, unit=8)
kernel("mx_f.s", sw*8, iters=200, unit=8)
kernel("mx_g.s", (m32(108)+"    s_nop 0\n"*4+m32(108)+"    s_nop 0\n"*4)*8, iters=200, unit=8)
```

```python
from gen1 import kernel
from gen_e import init, zinit
import gen_p
QA1,QA2,QB1,QB2 = 4,8,12,16
KB1=[20,28]; KB2=[24,32]; VB=[36,44]
OA,OB=128,144
def m32(d,A,B,C): return f"    v_mfma_f32_32x32x16_bf16 v[{d}:{d+15}], v[{A}:{A+3}], v[{B}:{B+3}], {('v[%d:%d]'%(C,C+15)) if C is not None else 0}\n"
def m2b(d,A,B): return f"    v_mfma_f32_32x32x4_2b_bf16 v[{d}:{d+31}], v[{A}:{A+1}], v[{B}:{B+1}], 0\n"
def smf(O,V,P): return f"    v_smfmac_f32_32x32x32_bf16 v[{O}:{O+15}], v[{V}:{V+3}], v[{P}:{P+7}], v52\n"
def ex(P,S,i0,n=4): return "".join(f"    v_exp_f32 v{P+i}, v{S+i}\n" for i in range(i0,i0+n))
def body():
    s=""
    PH=160
    for j in range(8):
        kb=vb=j&1; o=(j%2)*2048
        S=[64,96][j&1]; Sn=[64,96][1-(j&1)]
        SA,SB=S,S+16
        rk1=f"    ds_read_b128 v[{KB1[kb]}:{KB1[kb]+3}], v53 offset:{o}\n"; rk2=f"    ds_read_b64 v[{KB2[kb]}:{KB2[kb]+1}], v54 offset:{o}\n"
        rv0=f"    ds_read_b128 v[{VB[1-vb]}:{VB[1-vb]+3}], v55 offset:{4096+o}\n"; rv1=f"    ds_read_b128 v[{VB[1-vb]+4}:{VB[1-vb]+7}], v55 offset:{5120+o}\n"
        w="    s_waitcnt lgkmcnt(0)\n"
        s+=w+m2b(Sn,KB2[1-kb],QA2)+rk2+ex(SA,SA,0,8)+smf(OB,VB[1-vb]+4,PH)+rk1+ex(SA,SA,8)+smf(OA,VB[vb],SA)+rv0+ex(SA,SA,12)
        s+=m32(Sn,KB1[1-kb],QA1,Sn)+rv1+ex(SB,SB,0)+m32(Sn+16,KB1[1-kb],QB1,Sn+16)+ex(SB,SB,4)+smf(OA,VB[vb]+4,SA+8)+ex(PH-8,SB,8)+smf(OB,VB[vb],SB)+ex(PH-8,SB,12)
    return s
ini = init + zinit("A").replace("v_mov_b32 v9, 0","v_nop").replace("v_mov_b32 v17, 0","v_nop") + "    v_lshlrev_b32 v54, 1, v54\n"
for k in range(2):
    kernel(f"ap_m2b_{k}.s", body(), init=ini, block=256, lds=65536+1024, iters=8, unit=16, x=128, y=144)
```

```python
from gen1 import kernel
from gen_s import m32, m2b, smf, ex, QA1,QA2,QB1,QB2,KB1,KB2,VB,OA,OB, ini
def body(order, splits, rpos):
    s=""; PH=160
    for j in range(8):
        kb=vb=j&1; o=(j%2)*2048
        S=[64,96][j&1]; Sn=[64,96][1-(j&1)]; SA,SB=S,S+16
        R={"k2":f"    ds_read_b64 v[{KB2[kb]}:{KB2[kb]+1}], v54 offset:{o}\n","k1":f"    ds_read_b128 v[{KB1[kb]}:{KB1[kb]+3}], v53 offset:{o}\n",
           "v0":f"    ds_read_b128 v[{VB[1-vb]}:{VB[1-vb]+3}], v55 offset:{4096+o}\n","v1":f"    ds_read_b128 v[{VB[1-vb]+4}:{VB[1-vb]+7}], v55 offset:{5120+o}\n"}
        M={"m":m2b(Sn,KB2[1-kb],QA2),"b2":smf(OB,VB[1-vb]+4,PH),"a1":smf(OA,VB[vb],SA),"qa":m32(Sn,KB1[1-kb],QA1,Sn),"qb":m32(Sn+16,KB1[1-kb],QB1,Sn+16),"a2":smf(OA,VB[vb]+4,SA+8),"b1":smf(OB,VB[vb],SB)}
        E=[f"    v_exp_f32 v{SA+i}, v{SA+i}\n" for i in range(16)]+[f"    v_exp_f32 v{SB+i}, v{SB+i}\n" for i in range(8)]+[f"    v_exp_f32 v{PH+i-8}, v{SB+i}\n" for i in range(8,16)]
        s+="    s_waitcnt lgkmcnt(0)\n"; e=0
        for k,(m,n) in enumerate(zip(order,splits)):
            s+=M.get(m,"")+R.get(rpos.get(m,""),"")+"".join(E[e:e+n]); e+=n
        assert e==32
    return s
V={
 "o0":(["m","b2","a1","qa","qb","a2","b1"],[8,4,4,4,4,4,4],{"m":"k2","b2":"k1","a1":"v0","qa":"v1"}),
 "o1":(["m","b2","a1","qa","a2","qb","b1"],[8,4,4,4,4,4,4],{"m":"k2","b2":"k1","a1":"v0","qa":"v1"}),
 "o2":(["m","b2","a1","qa","qb","a2","b1"],[8,4,4,4,4,4,4],{"m":"k2","qa":"k1","qb":"v0","a2":"v1"}),
 "o3":(["","b2","m","a1","qa","qb","a2","b1"],[2,4,8,4,4,4,4,2],{"m":"k2","b2":"k1","a1":"v0","qa":"v1"}),
 "o4":(["m","b2","a1","qa","qb","a2","b1"],[9,4,4,3,4,4,4],{"m":"k2","b2":"k1","a1":"v0","qa":"v1"}),
 "o5":(["m","b2","a1","qa","qb","a2","b1"],[10,4,4,3,3,4,4],{"m":"k2","b2":"k1","a1":"v0","qa":"v1"}),
 "o6":(["m","b2","a1","qa","a2","qb","b1"],[8,5,5,3,4,3,4],{"m":"k2","b2":"k1","a1":"v0","qa":"v1"}),
}
for v,(o,sp,rp) in V.items():
    for k in range(2):
        kernel(f"ar_{v}_{k}.s", body(o,sp,rp), init=ini, block=256, lds=65536+1024, iters=8, unit=16, x=128, y=144)
```

```python
import sys
HDR = """; @launch grid=(256,1,1) block=(512,1,1) lds=131072
; @iters 1
.amdgcn_target "amdgcn-amd-amdhsa--gfx950"
.text
.globl mb_kernel
.p2align 8
.type mb_kernel,@function
mb_kernel:
    s_memtime s[24:25]
    s_memrealtime s[28:29]
    s_load_dwordx4 s[4:7], s[0:1], 0
    v_lshrrev_b32 v200, 6, v0
    s_nop 0
    v_readfirstlane_b32 s20, v200
    s_mul_i32 s21, s2, 8
    s_add_u32 s21, s21, s20
    s_waitcnt lgkmcnt(0)
    s_mov_b32 s8, s4
    s_mov_b32 s9, s5
    s_mov_b32 s10, 0x1000000
    s_mov_b32 s11, 0x20000
    s_mov_b32 s12, s6
    s_mov_b32 s13, s7
    s_mov_b32 s14, 0x1000000
    s_mov_b32 s15, 0x20000
"""
FTR = """
    s_waitcnt vmcnt(0)
    s_memtime s[26:27]
    s_memrealtime s[30:31]
    s_waitcnt lgkmcnt(0)
    s_sub_u32 s26, s26, s24
    s_sub_u32 s30, s30, s28
    v_mov_b32 v204, s26
    v_mov_b32 v205, s30
    v_mov_b32 v206, s40
    v_mov_b32 v207, s28
    s_lshl_b32 s21, s21, 4
    v_mov_b32 v202, s21
    v_and_b32 v203, 63, v0
    v_cmp_eq_u32 vcc, 0, v203
    s_and_saveexec_b64 s[32:33], vcc
    buffer_store_dwordx4 v[204:207], v202, s[12:15], 0 offen
    s_waitcnt vmcnt(0)
    s_endpgm
.section .rodata,"a"
.p2align 6
.amdhsa_kernel mb_kernel
  .amdhsa_next_free_vgpr 256
  .amdhsa_next_free_sgpr 102
  .amdhsa_accum_offset 256
  .amdhsa_group_segment_fixed_size 0
  .amdhsa_kernarg_size 16
  .amdhsa_user_sgpr_count 2
  .amdhsa_user_sgpr_kernarg_segment_ptr 1
  .amdhsa_system_sgpr_workgroup_id_x 1
.end_amdhsa_kernel
"""
def gen(name, mapping, dox, dow, xmode, flags=""):
    s = HDR
    if mapping == "xcd":
        s += "    s_and_b32 s41, s2, 7\n    s_lshr_b32 s42, s2, 3\n    s_lshl_b32 s43, s41, 2\n    s_lshr_b32 s44, s42, 3\n    s_add_u32 s43, s43, s44\n    s_and_b32 s44, s42, 7\n"
    else:
        s += "    s_lshr_b32 s43, s2, 3\n    s_and_b32 s44, s2, 7\n"
    s += "    v_and_b32 v1, 63, v0\n"
    if dox:
        s += "    s_mul_i32 s45, s43, 81920\n"
        if xmode == "lin":
            s += "    s_mul_i32 s46, s20, 10240\n    s_add_u32 s45, s45, s46\n    v_lshlrev_b32 v2, 4, v1\n    v_add_u32 v2, s45, v2\n"
            for i in range(10):
                s += f"    buffer_load_dwordx4 v[{16+4*i}:{19+4*i}], v2, s[8:11], 0 offen offset:{(i%4)*1024} {flags}\n"
                if i%4==3: s += "    v_add_u32 v2, 4096, v2\n"
        else:
            s += "    s_and_b32 s46, s20, 1\n    s_mul_i32 s46, s46, 40960\n    s_add_u32 s45, s45, s46\n    s_lshr_b32 s46, s20, 1\n    s_mul_i32 s46, s46, 320\n    s_add_u32 s45, s45, s46\n"
            s += "    v_and_b32 v2, 31, v1\n    v_mul_u32_u24 v2, 1280, v2\n    v_lshrrev_b32 v3, 5, v1\n    v_lshlrev_b32 v3, 4, v3\n    v_add3_u32 v2, v2, v3, s45\n"
            for i in range(10):
                s += f"    buffer_load_dwordx4 v[{16+4*i}:{19+4*i}], v2, s[8:11], 0 offen offset:{i*32} {flags}\n"
    if dow:
        s += "    s_mul_i32 s46, s44, 160\n    s_add_u32 s46, s46, 0x400000\n    s_mov_b32 s48, 0x1999999a\n"
        for i in range(13):
            s += f"    s_lshl_b32 s47, s20, 6\n    s_add_u32 s47, s47, {i*512}\n    v_add_u32 v4, s47, v1\n    v_mul_hi_u32 v5, v4, s48\n    v_mul_u32_u24 v6, 10, v5\n    v_sub_u32 v6, v4, v6\n    v_mul_u32_u24 v5, 1280, v5\n    v_lshlrev_b32 v6, 4, v6\n    v_add3_u32 v5, v5, v6, s46\n"
            s += f"    s_lshl_b32 s47, s47, 4\n    s_mov_b32 m0, s47\n    s_nop 0\n    buffer_load_dwordx4 v5, s[8:11], 0 offen lds {flags}\n"
    s += FTR
    open(name,"w").write(s)
for mp in ("xcd","lin"):
    gen(f"ld_{mp}_both_frag.s", mp, 1, 1, "frag")
    gen(f"ld_{mp}_both_lin.s", mp, 1, 1, "lin")
    gen(f"ld_{mp}_x_frag.s", mp, 1, 0, "frag")
    gen(f"ld_{mp}_x_lin.s", mp, 1, 0, "lin")
    gen(f"ld_{mp}_w.s", mp, 0, 1, "lin")
gen(f"ld_none.s", "xcd", 0, 0, "lin")
gen(f"ld_xcd_x_frag_sc1.s", "xcd", 1, 0, "frag", "sc1")
```

```python
from gen_f import HDR, FTR
def gen(name, rot, mapping="xcd", kv=1, dox=1, dow=1, wp=12, fl=""):
    s = HDR.replace("lds=131072","lds=163840")
    if mapping == "xcd":
        s += "    s_and_b32 s41, s2, 7\n    s_lshr_b32 s42, s2, 3\n    s_lshl_b32 s43, s41, 2\n    s_lshr_b32 s44, s42, 3\n    s_add_u32 s43, s43, s44\n    s_and_b32 s44, s42, 7\n"
    else:
        s += "    s_lshr_b32 s43, s2, 3\n    s_and_b32 s44, s2, 7\n"
    s += "    v_and_b32 v1, 63, v0\n"
    if rot == 0: s += "    s_mov_b32 s50, 0\n"
    elif rot == 1: s += "    s_and_b32 s50, s43, 3\n    s_add_u32 s50, s50, s44\n    s_mul_i32 s51, s50, 52429\n    s_lshr_b32 s51, s51, 18\n    s_mul_i32 s51, s51, 5\n    s_sub_u32 s50, s50, s51\n"
    if kv:
        s += "    s_and_b32 s45, s44, 1\n    s_mul_i32 s45, s45, 32768\n    s_add_u32 s45, s45, 0x600000\n    s_lshl_b32 s46, s20, 10\n    s_add_u32 s45, s45, s46\n    v_lshlrev_b32 v2, 4, v1\n    v_add_u32 v2, s45, v2\n"
        for i in range(3):
            s += f"    s_add_u32 s47, s46, {i*8192}\n    s_mov_b32 m0, s47\n    s_mov_b32 s49, {i*8192}\n    buffer_load_dwordx4 v2, s[8:11], s49 offen lds\n"
    s += "    s_mul_i32 s45, s43, 81920\n    s_mul_i32 s46, s20, 10240\n    s_add_u32 s45, s45, s46\n    v_lshrrev_b32 v2, 4, v1\n    v_mul_u32_u24 v2, 1280, v2\n    v_and_b32 v3, 15, v1\n    v_lshlrev_b32 v3, 4, v3\n    v_add3_u32 v2, v2, v3, s45\n    v_add_u32 v3, 5120, v2\n"
    magic = {12:0x15555556, 10:0x1999999a}[wp]
    s += f"    s_mul_i32 s46, s44, 160\n" + ("    s_and_b32 s46, s46, 0xffffffc0\n" if wp==12 else "") + f"    s_add_u32 s46, s46, 0x400000\n    s_mov_b32 s48, {hex(magic)}\n"
    for i in range(3):
        s += f"    s_lshl_b32 s47, s20, 6\n    s_add_u32 s47, s47, {i*512}\n    v_add_u32 v4, s47, v1\n    v_mul_hi_u32 v5, v4, s48\n    v_mul_u32_u24 v6, {wp}, v5\n    v_sub_u32 v6, v4, v6\n    v_mul_u32_u24 v5, 1280, v5\n    v_lshlrev_b32 v6, 4, v6\n    v_add3_u32 v{8+i}, v5, v6, s46\n"
    reg = 16
    lds = 24576
    for u in range(5):
        s += "    s_lshl_b32 s52, s50, 8\n    s_mul_i32 s53, s50, 163840\n    s_lshl_b32 s47, s20, 10\n"
        if dox:
            for j in range(2):
                s += f"    s_add_u32 s54, s47, {lds}\n    s_mov_b32 m0, s54\n    s_nop 0\n    buffer_load_dwordx4 v{2+j}, s[8:11], s52 offen lds\n"; lds += 8192
        if dow:
            nj = 3
            for j in range(nj):
                if wp == 10 and j == 2:
                    s += "    s_cmp_ge_u32 s20, 4\n    s_cbranch_scc1 L_sk%d\n" % u
                if u < 2:
                    s += f"    s_add_u32 s54, s47, {lds}\n    s_mov_b32 m0, s54\n    s_nop 0\n    buffer_load_dwordx4 v{8+j}, s[8:11], s53 offen{fl} lds\n"; lds += 8192
                else:
                    s += f"    buffer_load_dwordx4 v[{reg}:{reg+3}], v{8+j}, s[8:11], s53 offen{fl}\n"; reg += 4
                if wp == 10 and j == 2: s += "L_sk%d:\n" % u
        s += "    s_add_u32 s50, s50, 1\n    s_cmp_eq_u32 s50, 5\n    s_cselect_b32 s50, 0, s50\n"
    assert lds <= 163840
    s += FTR
    open(name,"w").write(s)
for fl,nm in (("","plain"),(" nt","nt"),(" sc1","sc1"),(" sc0","sc0"),(" sc0 sc1","sc01")):
    gen(f"ld_v_w_{nm}.s", 1, "xcd", kv=0, dox=0, fl=fl)
    gen(f"ld_v_all_{nm}.s", 1, "xcd", fl=fl)
    gen(f"ld_v_w10_{nm}.s", 1, "xcd", kv=0, dox=0, wp=10, fl=fl)
```
